```python
import torch

def _softmax(x, axis=-1):
    return torch.softmax(x, dim=axis)
def _gelu(x):
    return torch.nn.functional.gelu(x, approximate="tanh")
def _silu(x):
    return torch.nn.functional.silu(x)
def _sigmoid(x):
    return torch.sigmoid(x)
def _layernorm(x, axis=-1, eps=1e-5):
    m = x.mean(dim=axis, keepdim=True)
    v = x.var(dim=axis, keepdim=True, unbiased=False)
    return (x - m) / torch.sqrt(v + eps)
def _scatter_add(tgt, idx, src, axis=0):
    return tgt.clone().index_add_(axis, idx, src)
def _segment_sum(src, seg, n):
    out = torch.zeros((n,) + src.shape[1:], dtype=src.dtype)
    return out.index_add_(0, seg, src)
def _pad(x, pw):
    flat = tuple(v for pair in reversed(pw) for v in pair)
    return torch.nn.functional.pad(x, flat)

kernel_name = 'sequential_preLN__linear_kernel_hedgehog__dense_activation_relu__prompt'

def setup_inputs():

    _w = (lambda a: (lambda t: t.to(torch.bfloat16) if t.is_floating_point() else t)(torch.as_tensor(a)))
    def _A_setup():
        B, S, D, H = 1, 2048, 640, 32
        Dh = D // H
        return {
            "x": _w((lambda *s: torch.randn(*s, dtype=torch.bfloat16) * 0.05)(B, S, D)),
            "wqkv": _w((lambda *s: torch.randn(*s, dtype=torch.bfloat16) * 0.2)(D, 3 * D)),
            "w_phi": _w((lambda *s: torch.randn(*s, dtype=torch.bfloat16) * 0.2)(H, Dh, Dh) * (Dh ** -0.5)),
            "wo": _w((lambda *s: torch.randn(*s, dtype=torch.bfloat16) * 0.05)(D, D)),
        }
    _A_in = _A_setup()

    def _B_setup():
        B, S, D, Dff = 1, 2048, 640, 1536
        return {
            "x": _w((lambda *s: torch.randn(*s, dtype=torch.bfloat16) * 0.05)(B, S, D)),
            "w1": _w((lambda *s: torch.randn(*s, dtype=torch.bfloat16) * 0.05)(D, Dff)),
            "w2": _w((lambda *s: torch.randn(*s, dtype=torch.bfloat16) * 0.05)(Dff, D)),
        }
    _B_in = _B_setup()

    return {
        "A_x": _A_in["x"],
        "A_wqkv": _A_in["wqkv"],
        "A_w_phi": _A_in["w_phi"],
        "A_wo": _A_in["wo"],
        "B_x": _B_in["x"],
        "B_w1": _B_in["w1"],
        "B_w2": _B_in["w2"],
    }

def reference(A_x, A_wqkv, A_w_phi, A_wo, B_x, B_w1, B_w2):
    def _A_ref(x, wqkv, w_phi, wo):
        B, S, D = x.shape
        H = 32; Dh = D // H
        qkv = (lambda x, *d: x.permute(*d))((x @ wqkv).reshape(B, S, 3, H, Dh), 2, 0, 3, 1, 4)
        q, k, v = qkv[0], qkv[1], qkv[2]
        pq = torch.einsum("bhsd,hdf->bhsf", q, w_phi)
        pk = torch.einsum("bhsd,hdf->bhsf", k, w_phi)
        phi_q = torch.concatenate([_softmax(pq, axis=-1), _softmax(-pq, axis=-1)], axis=-1)
        phi_k = torch.concatenate([_softmax(pk, axis=-1), _softmax(-pk, axis=-1)], axis=-1)
        kv = torch.einsum("bhsf,bhsd->bhfd", phi_k, v)
        z  = torch.einsum("bhsf->bhf", phi_k)
        num = torch.einsum("bhqf,bhfd->bhqd", phi_q, kv)
        den = torch.einsum("bhqf,bhf->bhq", phi_q, z)[..., None] + 1e-6
        o = num / den
        return (lambda x, *d: x.permute(*d))(o, 0, 2, 1, 3).reshape(B, S, D) @ wo

    def _B_ref(x, w1, w2):
        h = torch.einsum("bsd,df->bsf", x, w1)
        zero = torch.zeros_like(h)
        h = torch.maximum(h, zero)
        return torch.einsum("bsf,fd->bsd", h, w2)

    x = A_x
    h = x + _A_ref(_layernorm(x, axis=-1), A_wqkv, A_w_phi, A_wo)
    h2 = h + _B_ref(_layernorm(h, axis=-1), B_w1, B_w2)
    return h2
```

```python
import re

_REG = re.compile(r"^(-?)(?:abs\()?\|?([vas])(?:(\d+)|\[(\d+):(\d+)\])\)?\|?$")
TRANS = ("v_exp_f32", "v_log_f32", "v_rcp_f32", "v_rsq_f32", "v_sqrt_f32")


def regs_of(tok):
    tok = tok.strip()
    if tok in ("vcc", "exec"):
        return {(tok, 0)}
    if tok == "m0":
        return {("m0", 0)}
    m = _REG.match(tok)
    if not m:
        return set()
    kind = m.group(2)
    if m.group(3) is not None:
        return {(kind, int(m.group(3)))}
    return {(kind, i) for i in range(int(m.group(4)), int(m.group(5)) + 1)}


class R:
    def __init__(self, kind, base, n):
        self.kind, self.base, self.n = kind, base, n

    def __getitem__(self, i):
        if isinstance(i, slice):
            a = i.start or 0
            b = self.n if i.stop is None else i.stop
            assert 0 <= a < b <= self.n, (a, b, self.n)
            return R(self.kind, self.base + a, b - a)
        assert 0 <= i < self.n, (i, self.n)
        return R(self.kind, self.base + i, 1)

    def __str__(self):
        if self.n == 1:
            return "%s%d" % (self.kind, self.base)
        return "%s[%d:%d]" % (self.kind, self.base, self.base + self.n - 1)

    __repr__ = __str__


class Ins:
    __slots__ = ("text", "op", "cls", "defs", "uses", "srcc", "store_data", "states")

    def __init__(self, text):
        self.text = text
        self.defs, self.uses, self.srcc, self.store_data = set(), set(), set(), set()
        self.states = 1
        t = text.split(";")[0].strip()
        if not t or t.endswith(":") or t.startswith("."):
            self.op, self.cls, self.states = "", "label", 0
            return
        parts = t.split(None, 1)
        op = self.op = parts[0]
        rest = parts[1] if len(parts) > 1 else ""
        toks = [x.strip() for x in re.split(r",(?![^\[]*\])", rest)] if rest else []
        if toks:
            last = toks[-1].split()
            mods = last[1:]
            toks[-1] = last[0] if last else ""
        else:
            mods = []
        rs = [regs_of(x) for x in toks]
        allr = set().union(*rs) if rs else set()
        if op.startswith("v_mfma"):
            self.cls = "mfma"
            self.defs = rs[0]
            self.uses = rs[1] | rs[2] | rs[3]
            self.srcc = rs[3]
        elif op.startswith("v_"):
            self.cls = "valu"
            if op.startswith("v_permlane"):
                self.defs = self.uses = allr
            elif op.startswith(("v_add_co", "v_addc_co", "v_sub_co")):
                self.defs = rs[0] | rs[1]
                self.uses = set().union(*rs[2:])
            else:
                self.defs = rs[0]
                self.uses = set().union(*rs[1:]) if len(rs) > 1 else set()
                if op.startswith(("v_fmac", "v_dot2c", "v_writelane")):
                    self.uses = self.uses | rs[0]
        elif op.startswith("ds_"):
            self.cls = "ds"
            if op.startswith(("ds_read", "ds_bpermute", "ds_permute", "ds_swizzle")):
                self.defs = rs[0]
                self.uses = set().union(*rs[1:])
            else:
                self.uses = allr
        elif op.startswith(("buffer_", "global_")):
            self.cls = "vmem"
            if "lds" in mods:
                self.uses = allr | {("m0", 0)}
            elif "_load" in op:
                self.defs = rs[0]
                self.uses = set().union(*rs[1:])
            else:
                self.uses = allr
                if op.endswith(("x3", "x4")):
                    self.store_data = rs[0]
        elif op == "s_nop":
            self.cls = "nop"
            self.states = int(toks[0], 0) + 1
        elif op.startswith("s_"):
            self.cls = "salu"
            nodef = ("s_cmp", "s_cbranch", "s_branch", "s_waitcnt", "s_barrier", "s_endpgm", "s_sleep",
                     "s_setprio", "s_bitcmp", "s_setpc")
            if op.startswith(nodef):
                self.uses = allr
            else:
                self.defs = rs[0] if rs else set()
                self.uses = set().union(*rs[1:]) if len(rs) > 1 else set()
                if "saveexec" in op:
                    self.defs = self.defs | {("exec", 0)}
        else:
            raise ValueError(text)


def is_vec(r):
    return r[0] in ("v", "a")


def need(p, c):
    n = 0
    if p.cls == "valu":
        vd = {r for r in p.defs if is_vec(r)}
        sd = p.defs - vd
        if vd:
            if c.cls == "mfma" and vd & c.uses:
                n = max(n, 2)
            if c.cls == "valu" and vd & c.uses:
                if c.op.startswith("v_permlane") or "dpp" in c.text:
                    n = max(n, 2)
                if c.op.startswith(("v_readlane", "v_readfirstlane")):
                    n = max(n, 1)
                if p.op.startswith(TRANS) and not c.op.startswith(TRANS):
                    n = max(n, 1)
            if p.op.startswith("v_dot2") and vd & (c.uses | c.defs) and c.op != p.op:
                n = max(n, 3)
            if p.op.startswith(TRANS) and c.cls in ("vmem", "ds", "mfma") and vd & c.uses:
                n = max(n, 2)
        if sd:
            if c.cls in ("valu", "mfma") and sd & c.uses:
                n = max(n, 4 if c.op.startswith(("v_readlane", "v_writelane")) else 2)
            if c.cls == "vmem" and sd & c.uses:
                n = max(n, 5)
            if c.cls == "salu" and sd & c.uses:
                n = max(n, 1)
    elif p.cls == "mfma":
        big = "32x32" in p.op
        if c.cls == "mfma":
            if p.defs & (c.uses - c.srcc):
                n = max(n, 12 if big else 8)
            if p.defs & c.srcc and p.defs != c.srcc:
                n = max(n, 10 if big else 6)
            if p.defs & c.defs and p.defs != c.srcc:
                n = max(n, 12 if big else 8)
        elif c.cls in ("valu", "vmem", "ds"):
            if p.defs & (c.uses | c.defs):
                n = max(n, 12 if big else 8)
            if c.cls == "valu" and p.srcc & c.defs:
                n = max(n, 7 if big else 3)
    elif p.cls == "vmem":
        if p.store_data and p.store_data & c.defs:
            n = max(n, 2)
    elif p.cls == "salu":
        if ("m0", 0) in p.defs and ("m0", 0) in c.uses:
            n = max(n, 1)
    return n


def pad_hazards(ins):
    out = []
    branches = {}

    def shortfall(c, idx, dist):
        short = 0
        while idx >= 0 and dist < 20:
            p = out[idx]
            if p.cls == "label":
                for b in branches.get(p.text.strip()[:-1], ()):
                    short = max(short, shortfall(c, b, dist))
                if idx > 0 and out[idx - 1].op in ("s_branch", "s_endpgm"):
                    return short
            elif p.cls != "nop":
                short = max(short, need(p, c) - dist)
            dist += p.states
            idx -= 1
        return short

    for c in ins:
        if c.cls not in ("label", "nop"):
            short = shortfall(c, len(out) - 1, 0)
            while short > 0:
                k = min(short, 16)
                out.append(Ins("s_nop %d" % (k - 1)))
                short -= k
        out.append(c)
        if c.op.startswith(("s_branch", "s_cbranch")):
            branches.setdefault(c.text.split()[1], []).append(len(out) - 1)
    return out


class Queue:
    def __init__(self, name, cap):
        self.name, self.cap = name, cap
        self.q = []
        self.next = 0

    def push(self, dests):
        self.q.append([self.next, True, set(dests)])
        self.next += 1
        return self.next - 1

    def count_after(self, t):
        return sum(1 for e in self.q if e[0] > t and e[1])

    def pending(self, t):
        return any(e[0] == t for e in self.q)

    def retire(self, t):
        self.q = [e for e in self.q if e[0] > t]


class K:
    def __init__(self):
        self.ins = []
        self.vm = Queue("vmcnt", 63)
        self.ds = Queue("lgkmcnt", 15)
        self.free = {"v": [True] * 256, "a": [True] * 256, "s": [True] * 102}
        self.nlabel = 0
        self.cond = []
        self.hi = {"v": 0, "a": 0, "s": 0}

    def alloc(self, kind, n, align=None, at=None):
        align = align or (1 if n == 1 else 2)
        f = self.free[kind]
        if at is not None:
            assert all(f[at:at + n]), (kind, at, n)
            b = at
        else:
            for b in range(0, len(f) - n + 1, align):
                if all(f[b:b + n]):
                    break
            else:
                raise RuntimeError("out of %s registers (need %d)" % (kind, n))
        for i in range(b, b + n):
            f[i] = False
        self.hi[kind] = max(self.hi[kind], b + n)
        return R(kind, b, n)

    def v(self, n=1, align=None, at=None):
        return self.alloc("v", n, align, at)

    def a(self, n=1, align=None, at=None):
        return self.alloc("a", n, align, at)

    def s(self, n=1, align=None, at=None):
        return self.alloc("s", n, align, at)

    def release(self, *rs):
        for r in rs:
            for i in range(r.base, r.base + r.n):
                assert not self.free[r.kind][i], r
                self.free[r.kind][i] = True

    def nfree(self, kind):
        return sum(self.free[kind])

    def _wait(self, q, t):
        if not q.pending(t):
            return
        n = min(q.count_after(t), q.cap)
        self.ins.append(Ins("s_waitcnt %s(%d)" % (q.name, n)))
        q.retire(t)

    def wait_vm(self, t):
        self._wait(self.vm, t)

    def wait_ds(self, t):
        self._wait(self.ds, t)

    def drain_vm(self):
        self.ins.append(Ins("s_waitcnt vmcnt(0)"))
        self.vm.q = []

    def drain_ds(self):
        self.ins.append(Ins("s_waitcnt lgkmcnt(0)"))
        self.ds.q = []

    def barrier(self):
        if self.ds.q:
            self.drain_ds()
        self.ins.append(Ins("s_barrier"))

    def e(self, text, *args):
        if args:
            text = text % args
        ticket = None
        for line in text.split("\n"):
            line = line.strip()
            if not line:
                continue
            i = Ins(line)
            touched = i.uses | i.defs
            for q in (self.vm, self.ds):
                hit = [en[0] for en in q.q if en[2] & touched]
                if hit:
                    self._wait(q, max(hit))
            self.ins.append(i)
            if i.cls == "vmem":
                ticket = self.vm.push(i.defs)
            elif i.cls == "ds":
                ticket = self.ds.push(i.defs)
        return ticket

    def label(self, stem="L"):
        self.nlabel += 1
        return "%s_%d" % (stem, self.nlabel)

    def put(self, label):
        self.ins.append(Ins(label + ":"))

    def cond_begin(self):
        self.cond.append(tuple((q.next, [list(e) for e in q.q]) for q in (self.vm, self.ds)))

    def cond_end(self):
        saved = self.cond.pop()
        for q, (mark, before) in zip((self.vm, self.ds), saved):
            inner = [e for e in q.q if e[0] >= mark]
            for e in inner:
                e[1] = False
            q.q = before + inner

    def either(self, cond_scc1, other):
        la, lb = self.label("L_alt"), self.label("L_join")
        snap = tuple((q.next, [list(e) for e in q.q]) for q in (self.vm, self.ds))
        self.e("s_cbranch_scc0 %s", la)
        r = cond_scc1()
        after = tuple((q.next, [e[0] for e in q.q]) for q in (self.vm, self.ds))
        self.e("s_branch %s", lb)
        self.put(la)
        for q, (nx, en) in zip((self.vm, self.ds), snap):
            q.next, q.q = nx, en
        other()
        assert after == tuple((q.next, [e[0] for e in q.q]) for q in (self.vm, self.ds))
        self.put(lb)
        return r

    def text(self):
        out = []
        for i in pad_hazards(self.ins):
            out.append(i.text if i.cls == "label" else "    " + i.text)
        return "\n".join(out)
```

```python
import sys
from emit import K, R

NAME = "sequential_preLN__linear_kernel_hedgehog__dense_activation_relu__prompt"

WO_OFF, W1_OFF, W2_OFF = 0x0, 0x100000, 0x300000
KVP_OFF, KVF_OFF, HS_OFF = 0x600000, 0xC00000, 0xC20000
FLAG_OFF = 0xC40000
FL_KVP, FL_KVF, FL_RL = FLAG_OFF + 0x4000, FLAG_OFF + 0x5000, FLAG_OFF + 0x6000
O_OFF, H_OFF, F_OFF = 0xD00000, 0x1000000, 0x1300000
STAMP_OFF, DUMP_OFF = 0x1A00000, 0x2000000
WS_BYTES = 0x1900000
N_UNITS = 216

SLOT = [81920, 102400, 0, 20480, 122880, 143360]
XS = 0
RLS = 122880
TR, TRP = 40960, 544
ZERO, WPH = 75776, 77824
KVL = TR
RED_B, RED_D = 81920, 0
HL = 81920
LDS_BYTES = 163840
MAT = [1280, 2560, 0]
SPIN = 1 << 18

HEAD = """; Fused pre-LN hedgehog linear attention + ReLU FFN, one persistent launch.
; 256 workgroups: 32 row blocks of 64 tokens x 8 column slices (4 heads / 80 / 192 columns).
; @launch grid=(256,1,1) block=(256,1,1) lds=%d
.amdgcn_target "amdgcn-amd-amdhsa--gfx950"
.text
.globl %s_kernel
.p2align 8
.type %s_kernel,@function
%s_kernel:
""" % (LDS_BYTES, NAME, NAME, NAME)

TAIL = """
.section .rodata,"a"
.p2align 6
.amdhsa_kernel %s_kernel
  .amdhsa_next_free_vgpr 512
  .amdhsa_next_free_sgpr 102
  .amdhsa_accum_offset 256
  .amdhsa_group_segment_fixed_size 0
  .amdhsa_kernarg_size 80
  .amdhsa_user_sgpr_count 2
  .amdhsa_user_sgpr_kernarg_segment_ptr 1
  .amdhsa_system_sgpr_workgroup_id_x 1
.end_amdhsa_kernel
""" % NAME


class Gen:
    def __init__(self, stamps=False, dumps=(), force_slow=False):
        self.k = K()
        self.stamps, self.dumps, self.force_slow = stamps, set(dumps), force_slow
        self.stamp_names = []
        self.dump_info = {}

    def mfma(self, d, a, b, c=None):
        self.k.e("v_mfma_f32_16x16x32_bf16 %s, %s, %s, %s", d, a, b, d if c is None else c)

    def srd(self, dst, ptr, nbytes):
        self.k.e("s_mov_b32 %s, %s\ns_mov_b32 %s, %s\ns_mov_b32 %s, 0x%x\ns_mov_b32 %s, 0x20000",
                 dst[0], ptr[0], dst[1], ptr[1], dst[2], nbytes, dst[3])

    def stamp(self, name):
        if not self.stamps:
            return
        k = self.k
        k.e("s_memrealtime %s", self.s_t)
        k.drain_ds()
        k.e("v_writelane_b32 %s, %s, %d", self.v_stamp, self.s_t[0], len(self.stamp_names))
        self.stamp_names.append(name)

    def dump(self, name, regs):
        if name not in self.dumps:
            return
        k = self.k
        idx = len(self.dump_info)
        self.dump_info[name] = (idx, regs.n)
        st, t = self.s_tmp, k.v()
        k.e("s_lshl_b32 %s, s2, 2\ns_add_u32 %s, %s, %s\ns_mul_i32 %s, %s, %d\ns_add_u32 %s, %s, 0x%x",
            st, st, st, self.s_wv, st, st, 128 * 256, st, st, DUMP_OFF + idx * 0x2000000)
        k.e("v_lshlrev_b32 %s, 2, %s", t, self.v_lane)
        for i in range(regs.n):
            k.e("buffer_store_dword %s, %s, %s, %s offen", regs[i], t, self.WS, st)
            k.e("s_add_u32 %s, %s, 256", st, st)
        k.drain_vm()
        k.release(t)

    def set_exec(self, mask):
        k = self.k
        if mask in (-1, 1):
            k.e("s_mov_b64 exec, %d", mask)
        else:
            k.e("s_mov_b32 exec_lo, 0x%x\ns_mov_b32 exec_hi, 0x%x", mask & 0xFFFFFFFF, mask >> 32)

    def wave_is(self, n):
        k = self.k
        lab = k.label("L_w")
        k.e("s_cmp_lg_u32 %s, %d\ns_cbranch_scc1 %s", self.s_wv, n, lab)
        k.cond_begin()
        return lab

    def close(self, lab):
        self.k.cond_end()
        self.k.put(lab)

    def shared_stores(self, fn):
        k = self.k
        k.e("s_cmp_lg_u32 %s, 0", self.s_fast)
        return k.either(lambda: fn(""), lambda: fn(" sc1"))

    def poll(self, voff, soff, nlanes, wide=False):
        k = self.k
        lab, out = k.label("L_poll"), k.label("L_pollout")
        t = k.v(4 if wide else 1)
        if nlanes < 64:
            self.set_exec((1 << nlanes) - 1)
        k.e("s_mov_b32 %s, 0", self.s_spin)
        k.put(lab)
        k.e("buffer_load_%s %s, %s, %s, %s offen sc1", "dwordx4" if wide else "dword", t, voff, self.WS, soff)
        k.e("s_add_u32 %s, %s, 1\ns_cmp_gt_u32 %s, %d\ns_cbranch_scc1 %s", self.s_spin, self.s_spin, self.s_spin, SPIN, out)
        k.drain_vm()
        if wide:
            k.e("v_min3_u32 %s, %s, %s, %s\nv_min_u32 %s, %s, %s", t[0], t[0], t[1], t[2], t[0], t[0], t[3])
        k.e("v_cmp_eq_u32 vcc, 0, %s\ns_cbranch_vccnz %s", t[0], lab)
        k.put(out)
        k.drain_vm()
        if nlanes < 64:
            self.set_exec(-1)
        k.release(t)

    def set_flag(self, soff, local):
        k = self.k
        self.set_exec(1)
        fn = lambda fl: k.e("buffer_store_dword %s, %s, %s, %s offen%s", self.v_one, self.v_zero, self.WS, soff, fl)
        if local:
            self.shared_stores(fn)
        else:
            fn(" sc1")
        self.set_exec(-1)

    def reduce2(self, a, b):
        k = self.k
        t = k.v()
        k.e("v_permlane32_swap_b32 %s, %s\nv_add_f32 %s, %s, %s\nv_mov_b32 %s, %s", a, b, a, a, b, t, a)
        k.e("v_permlane16_swap_b32 %s, %s\nv_add_f32 %s, %s, %s\nv_mov_b32 %s, %s", a, t, a, a, t, b, a)
        k.e("v_permlane32_swap_b32 %s, %s", a, b)
        k.release(t)

    def prologue(self):
        k = self.k
        k.s(3, at=0)
        self.X, self.WQKV, self.WS, self.DBG = (k.s(4, at=4 + 4 * i) for i in range(4))
        self.OUT, self.WPHI, self.RL = (k.s(4, at=20 + 4 * i) for i in range(3))
        self.ptr = k.s(20, at=32)
        for n in ("wv", "c", "G", "fast", "spin", "tmp", "tmp2", "m0w", "wcol", "unit"):
            setattr(self, "s_" + n, k.s())
        self.s_t = k.s(2)
        self.s_L = k.s(2)
        k.v(at=0)
        k.e("s_cmp_ge_u32 s2, 256\ns_cbranch_scc1 L_end")
        k.e("s_load_dwordx16 %s, s[0:1], 0\ns_load_dwordx4 %s, s[0:1], 64", self.ptr[0:16], self.ptr[16:20])
        for n in ("lane", "g", "s", "r", "cc", "zero", "one", "l16", "l8", "l4"):
            setattr(self, "v_" + n, k.v())
        if self.stamps:
            self.v_stamp = k.v()
            k.e("v_mov_b32 %s, 0", self.v_stamp)
        k.e("v_lshrrev_b32 %s, 6, v0\nv_and_b32 %s, 63, v0\nv_readfirstlane_b32 %s, %s",
            self.v_g, self.v_lane, self.s_wv, self.v_g)
        k.e("v_lshrrev_b32 %s, 4, %s\nv_and_b32 %s, 15, %s\nv_bfe_u32 %s, %s, 2, 2\nv_and_b32 %s, 3, %s",
            self.v_g, self.v_lane, self.v_s, self.v_lane, self.v_r, self.v_lane, self.v_cc, self.v_lane)
        k.e("v_mov_b32 %s, 0\nv_mov_b32 %s, 1", self.v_zero, self.v_one)
        k.e("v_lshlrev_b32 %s, 4, %s\nv_lshlrev_b32 %s, 3, %s\nv_lshlrev_b32 %s, 2, %s",
            self.v_l16, self.v_lane, self.v_l8, self.v_lane, self.v_l4, self.v_lane)
        k.e("s_bfe_u32 %s, s2, 0x30003\ns_and_b32 %s, s2, 7\ns_lshl_b32 %s, %s, 2\ns_lshr_b32 %s, s2, 6\ns_add_u32 %s, %s, %s",
            self.s_c, self.s_G, self.s_G, self.s_G, self.s_tmp, self.s_G, self.s_G, self.s_tmp)
        k.e("s_mov_b32 %s, 0x3fb8aa3b\ns_mov_b32 %s, 0x3fb8aa3b", self.s_L[0], self.s_L[1])
        k.e("s_mul_i32 %s, %s, 5120", self.s_m0w, self.s_wv)
        k.e("s_mul_i32 %s, %s, 122880\ns_mul_i32 %s, %s, 160\ns_add_u32 %s, %s, %s",
            self.s_wcol, self.s_wv, self.s_tmp, self.s_c, self.s_wcol, self.s_wcol, self.s_tmp)

        self.v_xd = k.v(5, align=1)
        t, u = k.v(), k.v()
        for n in range(5):
            d = self.v_xd[n]
            k.e("v_add_u32 %s, %d, %s\nv_mul_u32_u24 %s, 205, %s\nv_lshrrev_b32 %s, 14, %s", t, 64 * n, self.v_lane, u, t, u, u)
            k.e("v_mul_u32_u24 %s, 80, %s\nv_sub_u32 %s, %s, %s\nv_xor_b32 %s, %s, %s", d, u, t, t, d, t, t, u)
            k.e("v_mul_u32_u24 %s, 1280, %s\nv_lshl_add_u32 %s, %s, 4, %s", u, u, d, t, u)
        self.v_wd = k.v(5, align=1)
        w = k.v()
        for n in range(5):
            d = self.v_wd[n]
            k.e("v_add_u32 %s, %d, %s\nv_mul_u32_u24 %s, 6554, %s\nv_lshrrev_b32 %s, 16, %s", t, 64 * n, self.v_lane, u, t, u, u)
            k.e("v_mul_u32_u24 %s, 10, %s\nv_sub_u32 %s, %s, %s", d, u, t, t, d)
            k.e("v_and_b32 %s, 0x13, %s\nv_bfe_u32 %s, %s, 2, 1\nv_lshl_or_b32 %s, %s, 3, %s", d, u, w, u, d, w, d)
            k.e("v_bfe_u32 %s, %s, 3, 1\nv_lshl_or_b32 %s, %s, 2, %s", w, u, d, w, d)
            k.e("v_mul_u32_u24 %s, 3840, %s\nv_lshl_add_u32 %s, %s, 4, %s", d, d, d, t, d)
        k.release(t, u, w)

        k.e("s_waitcnt lgkmcnt(0)")
        p = self.ptr
        self.srd(self.X, p[0:2], 2621440)
        self.srd(self.WQKV, p[2:4], 2457600)
        self.srd(self.WPHI, p[4:6], 25600)
        self.srd(self.OUT, p[14:16], 2621440)
        self.srd(self.DBG, p[16:18], 256)
        self.srd(self.WS, p[18:20], 0x10000000 if (self.stamps or self.dumps) else WS_BYTES)
        self.stamp("start")

        st = self.s_tmp
        t = k.v()
        k.e("s_lshl_b32 %s, %s, 2\ns_add_u32 %s, %s, %s\ns_lshl_b32 %s, %s, 2\ns_mul_i32 %s, %s, 384\ns_add_u32 %s, %s, %s\ns_add_u32 %s, %s, 0x%x",
            st, self.s_c, st, st, self.s_wv, st, st, self.s_tmp2, self.s_G, st, st, self.s_tmp2, st, st, FLAG_OFF)
        self.s_oflag = k.s()
        k.e("s_mov_b32 %s, %s\nv_lshlrev_b32 %s, 7, %s", self.s_oflag, st, t, self.v_lane)
        self.set_exec(7)
        k.e("buffer_store_dword %s, %s, %s, %s offen sc1", self.v_zero, t, self.WS, self.s_oflag)
        self.s_kvflag, self.s_rlflag = k.s(), k.s()
        k.e("s_lshl_b32 %s, %s, 5\ns_add_u32 %s, %s, %s\ns_lshl_b32 %s, %s, 2\ns_add_u32 %s, %s, 0x%x",
            st, self.s_c, st, st, self.s_G, st, st, self.s_kvflag, st, FL_KVP)
        k.e("s_lshl_b32 %s, s2, 2\ns_add_u32 %s, %s, 0x%x", st, self.s_rlflag, st, FL_RL)
        lab = self.wave_is(0)
        self.set_exec(-1)
        k.e("v_lshlrev_b32 %s, 12, %s", t, self.v_lane)
        self.set_exec(3)
        k.e("buffer_store_dword %s, %s, %s, %s offen sc1", self.v_zero, t, self.WS, self.s_kvflag)
        self.set_exec(1)
        k.e("buffer_store_dword %s, %s, %s, %s offen sc1", self.v_zero, self.v_zero, self.WS, self.s_rlflag)
        self.close(lab)
        self.set_exec(-1)
        k.release(t)

        sx, sm = k.s(), k.s()
        t = k.v()
        k.e("s_lshl_b32 %s, %s, 2\ns_add_u32 %s, %s, %s\ns_mul_i32 %s, %s, 20480\ns_mul_i32 %s, %s, 20480",
            sx, self.s_G, sx, sx, self.s_wv, sx, sx, sm, self.s_wv)
        for m in range(4):
            for n in range(5):
                src = self.v_xd[n]
                if m:
                    k.e("v_xor_b32 %s, %d, %s", t, 64 * m, src)
                    src = t
                k.e("s_add_u32 m0, %s, %d", sm, XS + (5 * m + n) * 1024)
                self.t_x = k.e("buffer_load_dwordx4 %s, %s, %s offen lds", src, self.X, sx)
            k.e("s_add_u32 %s, %s, 5120", sx, sx)
        k.release(t, sx, sm, self.v_xd)

        self.v_wphi = k.v(4)
        t = k.v()
        k.e("v_lshlrev_b32 %s, 4, v0\ns_mul_i32 %s, %s, 3200", t, st, self.s_c)
        k.e("v_cmp_gt_u32 vcc, 200, v0\nv_mov_b32 %s, 0x7fff0000\nv_cndmask_b32 %s, %s, %s, vcc", self.v_wphi[0], t, self.v_wphi[0], t)
        self.t_wphi = k.e("buffer_load_dwordx4 %s, %s, %s, %s offen", self.v_wphi, t, self.WPHI, st)
        k.release(t)

    def relayout_load(self):
        k = self.k
        for n in ("cpr", "magic", "pitch", "b0", "dl", "col", "dst", "big", "row", "tst", "wst"):
            setattr(self, "s_r" + n, k.s())
        u, a, b, c2 = self.s_unit, self.s_tmp, self.s_tmp2, k.s()
        hf = k.s()
        l_w2, l_w1, l_oh, l_go, skip = (k.label("L_rl") for _ in range(5))
        k.e("s_mov_b32 %s, s2\ns_cmp_ge_u32 %s, %d\ns_cbranch_scc1 %s", u, u, N_UNITS, skip)
        k.cond_begin()
        k.e("s_cmp_ge_u32 %s, 136\ns_cbranch_scc1 %s\ns_cmp_ge_u32 %s, 40\ns_cbranch_scc1 %s", u, l_w1, u, l_w2)
        p = self.ptr

        def five_wide():
            k.e("s_mov_b32 %s, 40\ns_mov_b32 %s, 1639\ns_mov_b32 %s, 1280\ns_mul_i32 %s, %s, 640\ns_mov_b32 %s, 3072",
                self.s_rcpr, self.s_rmagic, self.s_rpitch, self.s_rcol, hf, self.s_rbig)
            k.e("s_mov_b32 %s, 640\ns_mov_b32 %s, 8\ns_mov_b32 %s, 160", self.s_rrow, self.s_rtst, self.s_rwst)

        self.srd(self.RL, p[6:8], 819200)
        k.e("s_mul_i32 %s, %s, 205\ns_lshr_b32 %s, %s, 11\ns_mul_i32 %s, %s, 10\ns_sub_u32 %s, %s, %s",
            a, u, a, a, b, a, b, u, b)
        k.e("s_and_b32 %s, %s, 1\ns_lshr_b32 %s, %s, 1", hf, b, b, b)
        five_wide()
        k.e("s_lshl_b32 %s, %s, 2\ns_add_u32 %s, %s, %s\ns_lshl_b32 %s, %s, 2\ns_add_u32 %s, %s, %s",
            c2, hf, c2, c2, self.s_wv, c2, c2, c2, c2, a)
        k.e("s_mul_i32 %s, %s, 5\ns_add_u32 %s, %s, %s\ns_mul_i32 %s, %s, 5120\ns_add_u32 %s, %s, 0x%x",
            c2, c2, c2, c2, b, c2, c2, self.s_rdst, c2, WO_OFF)
        k.e("s_branch %s", l_oh)

        k.put(l_w2)
        self.srd(self.RL, p[12:14], 1966080)
        k.e("s_sub_u32 %s, %s, 40\ns_mul_i32 %s, %s, 171\ns_lshr_b32 %s, %s, 12\ns_mul_i32 %s, %s, 24\ns_sub_u32 %s, %s, %s",
            c2, u, a, c2, a, a, b, a, b, c2, b)
        k.e("s_and_b32 %s, %s, 1\ns_lshr_b32 %s, %s, 1", hf, b, b, b)
        five_wide()
        k.e("s_lshl_b32 %s, %s, 2\ns_add_u32 %s, %s, %s\ns_lshl_b32 %s, %s, 2\ns_add_u32 %s, %s, %s",
            c2, hf, c2, c2, self.s_wv, c2, c2, c2, c2, a)
        k.e("s_mul_i32 %s, %s, 12\ns_add_u32 %s, %s, %s\ns_mul_i32 %s, %s, 5120\ns_add_u32 %s, %s, 0x%x",
            c2, c2, c2, c2, b, c2, c2, self.s_rdst, c2, W2_OFF)
        k.e("s_lshl_b32 %s, %s, 1\ns_cmp_ge_u32 %s, 6\ns_cselect_b32 %s, 6, 0\ns_addc_u32 %s, %s, 0\ns_sub_u32 %s, %s, %s",
            a, a, b, c2, a, a, b, b, c2)
        k.e("s_mul_i32 %s, %s, 192\ns_mul_i32 %s, %s, 48\ns_mul_i32 %s, %s, 96\ns_sub_u32 %s, %s, 352",
            a, a, c2, b, hf, b, hf, hf)
        k.e("s_cmp_ge_u32 %s, 4\ns_cselect_b32 %s, %s, %s\ns_cselect_b32 %s, 48, 16\ns_add_u32 %s, %s, %s",
            b, c2, hf, c2, self.s_rdl, a, a, c2)
        k.e("s_lshl_b32 %s, %s, 2\ns_add_u32 %s, %s, %s\ns_branch %s", c2, self.s_wv, self.s_rb0, a, c2, l_go)

        k.put(l_w1)
        self.srd(self.RL, p[10:12], 1966080)
        k.e("s_sub_u32 %s, %s, 136\ns_and_b32 %s, %s, 3\ns_lshr_b32 %s, %s, 2", c2, u, hf, c2, c2, c2)
        k.e("s_mov_b32 %s, 48\ns_mov_b32 %s, 1366\ns_mov_b32 %s, 3072\ns_mul_i32 %s, %s, 768\ns_mov_b32 %s, 61440",
            self.s_rcpr, self.s_rmagic, self.s_rpitch, self.s_rcol, hf, self.s_rbig)
        k.e("s_mov_b32 %s, 768\ns_mov_b32 %s, 32\ns_mov_b32 %s, 192", self.s_rrow, self.s_rtst, self.s_rwst)
        k.e("s_lshl_b32 %s, %s, 2\ns_add_u32 %s, %s, %s\ns_mul_i32 %s, %s, 40\ns_add_u32 %s, %s, %s",
            hf, hf, hf, hf, self.s_wv, hf, hf, hf, hf, c2)
        k.e("s_mul_i32 %s, %s, 3072\ns_add_u32 %s, %s, 0x%x", hf, hf, self.s_rdst, hf, W1_OFF)
        k.e("s_mul_i32 %s, %s, 205\ns_lshr_b32 %s, %s, 10\ns_mul_i32 %s, %s, 5\ns_sub_u32 %s, %s, %s",
            a, c2, a, a, b, a, b, c2, b)

        k.put(l_oh)
        k.e("s_mul_i32 %s, %s, 160\ns_lshl_b32 %s, %s, 3\ns_add_u32 %s, %s, %s", a, a, c2, b, a, a, c2)
        k.e("s_cmp_ge_u32 %s, 3\ns_cselect_b32 %s, 56, 0\ns_add_u32 %s, %s, %s", b, c2, a, a, c2)
        k.e("s_cmp_eq_u32 %s, 2\ns_cselect_b32 %s, 80, 4", b, self.s_rdl)
        k.e("s_mul_i32 %s, %s, 20\ns_add_u32 %s, %s, %s", c2, self.s_wv, self.s_rb0, a, c2)

        k.put(l_go)
        t, pl, ch = k.v(), k.v(), k.v()
        k.e("s_mul_i32 %s, %s, %s\ns_lshl_b32 %s, %s, 7\ns_add_u32 %s, %s, %d", a, self.s_rcpr, self.s_wv, a, a, a, a, RLS)
        last = k.label("L_rl")
        for n in range(6):
            if n == 5:
                k.e("s_cmp_eq_u32 %s, 40\ns_cbranch_scc1 %s", self.s_rcpr, last)
            k.e("v_add_u32 %s, %d, %s\nv_mul_u32_u24 %s, %s, %s\nv_lshrrev_b32 %s, 16, %s", t, 64 * n, self.v_lane, pl, self.s_rmagic, t, pl, pl)
            k.e("v_mul_u32_u24 %s, %s, %s\nv_sub_u32 %s, %s, %s", ch, self.s_rcpr, pl, ch, t, ch)
            k.e("v_lshrrev_b32 %s, 2, %s\nv_and_b32 %s, 3, %s\nv_mad_u32_u24 %s, %s, %s, %s\nv_add_u32 %s, %s, %s",
                t, pl, pl, pl, t, t, self.s_rdl, pl, t, self.s_rb0, t)
            k.e("v_mul_u32_u24 %s, %s, %s\nv_lshl_add_u32 %s, %s, 4, %s", t, self.s_rpitch, t, t, ch, t)
            k.e("s_add_u32 m0, %s, %d", a, 1024 * n)
            self.t_rl = k.e("buffer_load_dwordx4 %s, %s, %s offen lds", t, self.RL, self.s_rcol)
        k.put(last)
        k.cond_end()
        k.put(skip)
        k.release(t, pl, ch, c2, hf, self.s_rmagic, self.s_rpitch, self.s_rb0, self.s_rdl, self.s_rcol)

    def relayout_store(self):
        k = self.k
        skip, last = k.label("L_rs"), k.label("L_rs")
        k.e("s_cmp_ge_u32 %s, %d\ns_cbranch_scc1 %s", self.s_unit, N_UNITS, skip)
        k.cond_begin()
        a0, a1, t = k.v(), k.v(), k.v()
        fr = k.v(24)
        st = self.s_tmp
        k.e("s_cmp_eq_u32 %s, 40\ns_cselect_b32 %s, 40, 8", self.s_rcpr, st)
        k.e("v_lshl_add_u32 %s, %s, 3, %s\nv_mul_u32_u24 %s, %s, %s\nv_mad_u32_u24 %s, %s, %s, %s",
            t, self.v_g, self.v_r, a0, self.s_rrow, t, a0, self.v_cc, st, a0)
        k.e("s_mul_i32 %s, %s, %s\ns_add_u32 %s, %s, %d\nv_add_u32 %s, %s, %s", st, self.s_rwst, self.s_wv, st, st, RLS, a0, st, a0)
        k.e("s_lshl_b32 %s, %s, 2\nv_add_u32 %s, %s, %s", st, self.s_rrow, a1, st, a0)
        for n in range(6):
            k.e("ds_read_b64_tr_b16 %s, %s\nds_read_b64_tr_b16 %s, %s", fr[4 * n:4 * n + 2], a0, fr[4 * n + 2:4 * n + 4], a1)
            if n < 5:
                k.e("v_add_u32 %s, %s, %s\nv_add_u32 %s, %s, %s", a0, self.s_rtst, a0, a1, self.s_rtst, a1)
        k.e("s_add_u32 %s, %s, %s", st, self.s_rdst, self.s_rbig)
        for n in range(6):
            if n == 5:
                k.drain_ds()
                k.e("s_cmp_eq_u32 %s, 40\ns_cbranch_scc1 %s", self.s_rcpr, last)
            self.t_rlst = k.e("buffer_store_dwordx4 %s, %s, %s, %s offen offset:%d sc1",
                              fr[4 * n:4 * n + 4], self.v_l16, self.WS, self.s_rdst if n < 3 else st, 1024 * (n % 3))
        k.put(last)
        k.cond_end()
        k.put(skip)
        k.release(a0, a1, t, fr, self.s_rcpr, self.s_rdst, self.s_rbig, self.s_rrow, self.s_rtst, self.s_rwst)

    def w_dma(self, n):
        k = self.k
        if n > 14:
            return
        st = self.s_tmp
        k.e("s_add_u32 %s, %s, %d", st, self.s_wcol, MAT[n // 5] + (n % 5) * 4 * 122880)
        for i in range(5):
            k.e("s_add_u32 m0, %s, %d", self.s_m0w, SLOT[n % 6] + 1024 * i)
            self.t_w[n] = k.e("buffer_load_dwordx4 %s, %s, %s offen lds", self.v_wd[i], self.WQKV, st)

    def ln1(self):
        k = self.k
        self.xf = xf = k.v(80)
        self.xr = k.v(10)
        ad, t, u = k.v(4, align=1), k.v(), k.v()
        st = self.s_tmp
        k.e("s_mul_i32 %s, %s, 20480\nv_mul_u32_u24 %s, 1280, %s\nv_add_u32 %s, %s, %s", st, self.s_wv, u, self.v_s, u, st, u)
        k.e("v_xor_b32 %s, %s, %s\nv_lshl_add_u32 %s, %s, 4, %s", t, self.v_g, self.v_s, ad[0], t, u)
        for i in range(1, 4):
            k.e("v_xor_b32 %s, %d, %s", ad[i], 64 * i, ad[0])
        ra = k.v(5, align=1)
        k.e("s_mul_i32 %s, %s, 160", st, self.s_c)
        for i in range(5):
            k.e("v_mad_u32_u24 %s, %s, 40, %s\nv_add_u32 %s, %d, %s", t, self.v_g, st, t, 8 * i, t)
            k.e("v_lshlrev_b32 %s, 4, %s\nv_xor_b32 %s, %s, %s\nv_add_u32 %s, %s, %s", ra[i], self.v_s, t, t, ra[i], ra[i], t, u)
        k.wait_vm(self.t_x)
        self.stamp("x landed")
        for j in range(20):
            k.e("ds_read_b128 %s, %s offset:%d", xf[4 * j:4 * j + 4], ad[j & 3], XS + 256 * (j >> 2))
        for i in range(5):
            k.e("ds_read_b64 %s, %s offset:%d", self.xr[2 * i:2 * i + 2], ra[i], XS)
        k.release(ad, ra)
        a, b, ones = k.v(), k.v(), k.v()
        k.e("v_mov_b32 %s, 0\nv_mov_b32 %s, 0\nv_mov_b32 %s, 0x3f803f80", a, b, ones)
        for i in range(80):
            k.e("v_dot2c_f32_bf16 %s, %s, %s\nv_dot2c_f32_bf16 %s, %s, %s", a, xf[i], ones, b, xf[i], xf[i])
        self.reduce2(a, b)
        sc = k.v(2)
        self.mean_rstd(a, b, sc[0])
        k.e("v_mul_f32 %s, %s, %s\nv_sub_f32 %s, 0, %s", sc[1], a, sc[0], sc[1], sc[1])
        tp = k.v(8)
        for i in range(80):
            p = tp[2 * (i & 3):2 * (i & 3) + 2]
            k.e("v_lshlrev_b32 %s, 16, %s\nv_and_b32 %s, 0xffff0000, %s", p[0], xf[i], p[1], xf[i])
            k.e("v_pk_fma_f32 %s, %s, %s, %s op_sel:[0,0,1] op_sel_hi:[1,0,1]", p, p, sc, sc)
            k.e("v_cvt_pk_bf16_f32 %s, %s, %s", xf[i], p[0], p[1])
        k.release(a, b, ones, sc, tp, t, u)
        self.dump("xn", xf)

    def mean_rstd(self, a, b, rstd):
        k = self.k
        k.e("v_mul_f32 %s, 0x3acccccd, %s\nv_mul_f32 %s, 0x3acccccd, %s", a, a, b, b)
        k.e("v_fma_f32 %s, -%s, %s, %s\nv_max_f32 %s, 0, %s\nv_add_f32 %s, 0x3727c5ac, %s\nv_rsq_f32 %s, %s",
            b, a, a, b, b, b, b, b, rstd, b)

    def gemm_step(self, n, acc):
        k = self.k
        slot = SLOT[n % 6]
        base = self.v_wr[slot >> 16]
        off = slot & 0xFFFF
        buf = self.abuf

        def reads(jj, t):
            d = buf[20 * (jj & 1) + 4 * t:20 * (jj & 1) + 4 * t + 4]
            o = off + jj * 5120 + 8 * t
            b, o2 = (base, o) if o + 1280 < 65536 else (self.v_wr[(slot >> 16) + 1], o - 65536)
            if o < 65536 <= o + 1280:
                k.e("ds_read_b64_tr_b16 %s, %s offset:%d", d[0:2], base, o)
                k.e("ds_read_b64_tr_b16 %s, %s offset:%d", d[2:4], b, o2 + 1280)
            else:
                k.e("ds_read_b64_tr_b16 %s, %s offset:%d", d[0:2], b, o2)
                k.e("ds_read_b64_tr_b16 %s, %s offset:%d", d[2:4], b, o2 + 1280)

        for t in range(5):
            reads(0, t)
        for jj in range(4):
            j = 4 * (n % 5) + jj
            for t in range(5):
                if jj < 3:
                    reads(jj + 1, t)
                a = buf[20 * (jj & 1) + 4 * t:20 * (jj & 1) + 4 * t + 4]
                self.mfma(acc[4 * t:4 * t + 4], a, self.xf[4 * j:4 * j + 4], 0 if j == 0 else None)

    def wphi_frags(self):
        k = self.k
        wf = k.v(60)
        ad, t = k.v(), k.v()
        k.e("v_mul_u32_u24 %s, 800, %s\nv_mad_u32_u24 %s, %s, 40, %s\nv_add_u32 %s, %d, %s", t, self.v_g, t, self.v_r, t, t, WPH, t)
        k.e("v_cmp_eq_u32 vcc, %s, %s\nv_mov_b32 %s, %d\nv_cndmask_b32 %s, %s, %s, vcc", self.v_g, self.v_cc, ad, ZERO, ad, ad, t)
        for u in range(3):
            for t5 in range(5):
                d = wf[4 * (5 * u + t5):4 * (5 * u + t5) + 4]
                k.e("ds_read_b64_tr_b16 %s, %s offset:%d", d[0:2], ad, 320 * u + 8 * t5)
                if u < 2:
                    k.e("ds_read_b64_tr_b16 %s, %s offset:%d", d[2:4], ad, 320 * u + 160 + 8 * t5)
                else:
                    k.e("v_mov_b32 %s, 0\nv_mov_b32 %s, 0", d[2], d[3])
        k.release(ad, t)
        return wf

    def phi(self, acc, wf, name):
        k = self.k
        kb = k.v(12)
        for i in range(10):
            k.e("v_cvt_pk_bf16_f32 %s, %s, %s", kb[i], acc[2 * i], acc[2 * i + 1])
        k.e("v_mov_b32 %s, 0\nv_mov_b32 %s, 0", kb[10], kb[11])
        p = acc
        for u in range(3):
            for t in range(5):
                self.mfma(p[4 * t:4 * t + 4], wf[4 * (5 * u + t):4 * (5 * u + t) + 4], kb[4 * u:4 * u + 4], 0 if u == 0 else None)
        k.release(kb, wf)
        self.dump(name, p)
        m = k.v(2)
        k.e("v_max3_f32 %s, %s, %s, %s\nv_min3_f32 %s, %s, %s, %s", m[0], p[0], p[1], p[2], m[1], p[0], p[1], p[2])
        for i in range(3, 19, 2):
            k.e("v_max3_f32 %s, %s, %s, %s\nv_min3_f32 %s, %s, %s, %s", m[0], m[0], p[i], p[i + 1], m[1], m[1], p[i], p[i + 1])
        k.e("v_max_f32 %s, %s, %s\nv_min_f32 %s, %s, %s", m[0], m[0], p[19], m[1], m[1], p[19])
        k.e("v_pk_mul_f32 %s, %s, %s", m, m, self.s_L)
        e = k.v(40)
        for i in range(10):
            q = p[2 * i:2 * i + 2]
            k.e("v_pk_fma_f32 %s, %s, %s, %s op_sel_hi:[1,1,0] neg_lo:[0,0,1] neg_hi:[0,0,1]", e[2 * i:2 * i + 2], q, self.s_L, m)
            k.e("v_pk_fma_f32 %s, %s, %s, %s op_sel:[0,0,1] op_sel_hi:[1,1,1] neg_lo:[1,0,0] neg_hi:[1,0,0]",
                e[20 + 2 * i:22 + 2 * i], q, self.s_L, m)
        for i in range(40):
            k.e("v_exp_f32 %s, %s", e[i], e[i])
        sm = k.v(4)
        for h in range(2):
            s2 = sm[2 * h:2 * h + 2]
            k.e("v_pk_add_f32 %s, %s, %s", s2, e[20 * h:20 * h + 2], e[20 * h + 2:20 * h + 4])
            for i in range(2, 10):
                k.e("v_pk_add_f32 %s, %s, %s", s2, s2, e[20 * h + 2 * i:20 * h + 2 * i + 2])
        k.e("v_add_f32 %s, %s, %s\nv_add_f32 %s, %s, %s", m[0], sm[0], sm[1], m[1], sm[2], sm[3])
        k.e("v_rcp_f32 %s, %s\nv_rcp_f32 %s, %s", m[0], m[0], m[1], m[1])
        for i in range(20):
            q = e[2 * i:2 * i + 2]
            sel = "op_sel_hi:[1,0]" if i < 10 else "op_sel:[0,1] op_sel_hi:[1,1]"
            k.e("v_pk_mul_f32 %s, %s, %s %s", q, q, m, sel)
        for i in range(20):
            k.e("v_cvt_pk_bf16_f32 %s, %s, %s", p[i], e[2 * i], e[2 * i + 1])
        k.release(m, e, sm)
        return p

    def phase_a(self):
        k = self.k
        self.t_w = {}
        self.relayout_load()
        self.w_dma(0)
        self.w_dma(1)
        self.v_wr = k.v(3, align=1)
        t = k.v()
        k.e("v_lshrrev_b32 %s, 1, %s\nv_lshl_add_u32 %s, %s, 4, %s\nv_and_b32 %s, 1, %s\nv_lshl_add_u32 %s, %s, 2, %s",
            t, self.v_g, self.v_wr[0], t, self.v_r, t, self.v_g, t, t, self.v_wr[0])
        self.v_tok = k.v()
        k.e("v_mov_b32 %s, %s\nv_mul_u32_u24 %s, 160, %s\nv_mad_u32_u24 %s, %s, 40, %s", self.v_tok, t, t, t, self.v_wr[0], self.v_cc, t)
        k.e("v_add_u32 %s, 0x10000, %s\nv_add_u32 %s, 0x20000, %s", self.v_wr[1], self.v_wr[0], self.v_wr[2], self.v_wr[0])
        k.release(t)
        self.ln1()
        self.stamp("ln1")
        k.wait_vm(self.t_rl)
        k.wait_vm(self.t_wphi)
        k.barrier()
        lab = self.wave_is(0)
        t = k.v()
        st = self.s_tmp
        k.e("s_getreg_b32 %s, hwreg(HW_REG_XCC_ID, 0, 4)\ns_or_b32 %s, %s, 0x80\nv_mov_b32 %s, %s", st, st, st, t, st)
        k.e("s_and_b32 %s, s2, 7\ns_lshl_b32 %s, %s, 5\ns_lshr_b32 %s, s2, 3\ns_add_u32 %s, %s, %s",
            st, st, st, self.s_tmp2, st, st, self.s_tmp2)
        self.set_exec(1)
        k.e("buffer_store_byte %s, %s, %s, %s offen sc1", t, self.v_zero, self.DBG, st)
        self.set_exec(-1)
        k.release(t)
        self.close(lab)
        self.w_dma(2)
        self.w_dma(3)
        self.relayout_store()
        t, z = k.v(), k.v(2)
        k.e("v_lshlrev_b32 %s, 3, v0\nv_mov_b32 %s, 0\nv_mov_b32 %s, 0\nv_add_u32 %s, %d, %s", t, z[0], z[1], t, ZERO, t)
        k.e("ds_write_b64 %s, %s", t, z)
        k.e("v_lshlrev_b32 %s, 4, v0\nv_add_u32 %s, %d, %s\nv_cmp_gt_u32 vcc, 200, v0", t, t, WPH, t)
        lab = k.label("L_wp")
        k.e("s_and_b64 exec, exec, vcc\ns_cbranch_execz %s", lab)
        k.cond_begin()
        k.e("ds_write_b128 %s, %s", t, self.v_wphi)
        k.cond_end()
        k.put(lab)
        self.set_exec(-1)
        k.drain_ds()
        k.release(t, z, self.v_wphi)

        self.abuf = k.v(40)
        acc = k.v(20)
        wtr = k.v()
        k.e("s_lshl_b32 %s, %s, 4\nv_add_u32 %s, %s, %s\nv_mul_u32_u24 %s, %d, %s", st, self.s_wv, wtr, st, self.v_s, wtr, TRP, wtr)

        def step(n, acc):
            k.wait_vm(self.t_w[n])
            if n == 3:
                k.wait_vm(self.t_rlst)
            k.barrier()
            if n == 3:
                lab = self.wave_is(0)
                self.set_flag(self.s_rlflag, False)
                self.close(lab)
            if n == 0:
                self.w_dma(4)
            self.w_dma(n + 5)
            self.gemm_step(n, acc)

        for n in range(5):
            if n == 4:
                wf = self.wphi_frags()
            step(n, acc)
        self.stamp("K gemm")
        self.dump("k", acc)
        ph = self.phi(acc, wf, "pk")
        self.dump("phik", ph)
        t = k.v()
        k.e("v_mul_u32_u24 %s, 80, %s\nv_add_u32 %s, %s, %s", t, self.v_g, t, t, wtr)
        for i in range(5):
            k.e("ds_write_b128 %s, %s offset:%d", t, ph[4 * i:4 * i + 4], TR + 16 * i)
        self.stamp("phi k")
        for n in range(5, 10):
            step(n, acc)
        self.stamp("V gemm")
        self.dump("v", acc)
        vb = k.v(12)
        for i in range(10):
            k.e("v_cvt_pk_bf16_f32 %s, %s, %s", vb[i], acc[2 * i], acc[2 * i + 1])
        k.e("v_mov_b32 %s, 0x3f80\nv_mov_b32 %s, 0\nv_mad_u32_u24 %s, %s, 48, %s", vb[10], vb[11], t, self.v_g, wtr)
        for i in range(3):
            k.e("ds_write_b128 %s, %s offset:%d", t, vb[4 * i:4 * i + 4], TR + 320 + 16 * i)
        k.release(vb, t, wtr)
        k.barrier()
        self.kv_partial()
        self.stamp("kv partial")
        for n in range(10, 15):
            if n == 14:
                wf = self.wphi_frags()
            step(n, acc)
        self.stamp("Q gemm")
        self.dump("q", acc)
        k.release(self.abuf, self.xf, self.v_wr, self.v_wd)
        self.phq = self.phi(acc, wf, "pq")
        self.dump("phiq", self.phq)
        self.stamp("phi q")

    def kv_partial(self):
        k = self.k
        st = self.s_tmp
        aa, ab = k.v(), k.v()
        k.e("v_mul_u32_u24 %s, %d, %s\nv_lshl_add_u32 %s, %s, 3, %s", aa, TRP, self.v_tok, aa, self.v_cc, aa)
        k.e("s_mul_i32 %s, %s, 48\ns_add_u32 %s, %s, %d\nv_add_u32 %s, %s, %s", st, self.s_wv, st, st, TR + 320, ab, st, aa)
        k.e("s_mul_i32 %s, %s, 80\ns_add_u32 %s, %s, %d\nv_add_u32 %s, %s, %s", st, self.s_wv, st, st, TR, aa, st, aa)
        fa, fb, d = k.v(24), k.v(16), k.v(24)
        for ks in range(2):
            for fr, ad, n in ((fa, aa, 3), (fb, ab, 2)):
                for t in range(n):
                    x = fr[4 * (n * ks + t):4 * (n * ks + t) + 4]
                    o = ks * 32 * TRP + 32 * t
                    k.e("ds_read_b64_tr_b16 %s, %s offset:%d\nds_read_b64_tr_b16 %s, %s offset:%d", x[0:2], ad, o, x[2:4], ad, o + 8 * TRP)
        for ks in range(2):
            for tf in range(3):
                for td in range(2):
                    self.mfma(d[4 * (2 * tf + td):4 * (2 * tf + td) + 4], fa[4 * (3 * ks + tf):4 * (3 * ks + tf) + 4],
                              fb[4 * (2 * ks + td):4 * (2 * ks + td) + 4], 0 if ks == 0 else None)
        k.e("v_lshlrev_b32 %s, 8, %s\nv_lshl_add_u32 %s, %s, 4, %s", aa, self.v_s, aa, self.v_g, aa)
        k.e("s_lshl_b32 %s, %s, 5\ns_add_u32 %s, %s, %s\ns_lshl_b32 %s, %s, 2\ns_add_u32 %s, %s, %s\ns_mul_i32 %s, %s, 6144\ns_add_u32 %s, %s, 0x%x",
            st, self.s_c, st, st, self.s_G, st, st, st, st, self.s_wv, st, st, st, st, KVP_OFF)
        k.e("s_add_u32 %s, %s, 4096", self.s_tmp2, st)
        for td, tf, mask in ((0, 0, -1), (0, 1, -1), (0, 2, 0xFFFFFFFF), (1, 0, 0x001F001F001F001F), (1, 1, None), (1, 2, 0x001F001F)):
            if mask is not None:
                self.set_exec(mask)
            k.e("buffer_store_dwordx4 %s, %s, %s, %s offen offset:%d sc1",
                d[4 * (2 * tf + td):4 * (2 * tf + td) + 4], aa, self.WS, self.s_tmp2 if td else st, 64 * tf)
        self.set_exec(-1)
        k.drain_vm()
        k.barrier()
        lab = self.wave_is(0)
        self.set_flag(self.s_kvflag, False)
        self.close(lab)
        k.release(aa, ab, fa, fb, d, self.v_tok)

    def init_check(self):
        k = self.k
        lab, out = k.label("L_init"), k.label("L_initout")
        t, u = k.v(), k.v()
        k.e("s_mov_b32 %s, 0", self.s_spin)
        k.put(lab)
        k.e("buffer_load_dword %s, %s, %s, 0 offen sc1", t, self.v_l4, self.DBG)
        k.e("s_add_u32 %s, %s, 1\ns_cmp_gt_u32 %s, %d\ns_cbranch_scc1 %s", self.s_spin, self.s_spin, self.s_spin, SPIN, out)
        k.drain_vm()
        k.e("v_and_b32 %s, 0x80808080, %s\nv_cmp_ne_u32 vcc, 0x80808080, %s\ns_cbranch_vccnz %s", u, t, u, lab)
        k.put(out)
        k.drain_vm()
        st, s2 = self.s_tmp, self.s_tmp2
        k.e("s_lshl_b32 %s, %s, 1\nv_readlane_b32 %s, %s, %s\ns_add_u32 %s, %s, 1\nv_readlane_b32 %s, %s, %s",
            st, self.s_G, s2, t, st, st, st, self.s_fast, t, st)
        k.e("s_getreg_b32 %s, hwreg(HW_REG_XCC_ID, 0, 4)\ns_or_b32 %s, %s, 0x80\ns_mul_i32 %s, %s, 0x01010101", st, st, st, st, st)
        k.e("s_xor_b32 %s, %s, %s\ns_xor_b32 %s, %s, %s\ns_or_b32 %s, %s, %s", s2, s2, st, self.s_fast, self.s_fast, st, s2, s2, self.s_fast)
        k.e("s_cmp_eq_u32 %s, 0\ns_cselect_b32 %s, %d, 0", s2, self.s_fast, 0 if self.force_slow else 1)
        k.release(t, u)

    def kv_reduce(self):
        k = self.k
        st, s2 = self.s_tmp, self.s_tmp2
        skip = k.label("L_kvr")
        k.e("s_and_b32 %s, %s, 7\ns_cmp_eq_u32 %s, 7\ns_cbranch_scc1 %s\ns_cmp_eq_u32 %s, 3\ns_cbranch_scc1 %s",
            st, self.s_G, st, skip, self.s_wv, skip)
        k.cond_begin()
        k.e("s_lshl_b32 %s, %s, 7\ns_add_u32 %s, %s, 0x%x", st, self.s_c, st, st, FL_KVP)
        self.poll(self.v_l4, st, 32)
        self.stamp("kvp seen")
        row = k.s()
        k.e("s_and_b32 %s, %s, 7\ns_mul_i32 %s, %s, 3\ns_add_u32 %s, %s, %s\ns_lshr_b32 %s, %s, 3\ns_mul_i32 %s, %s, 24\ns_add_u32 %s, %s, %s",
            st, self.s_G, st, st, st, st, self.s_wv, row, self.s_G, row, row, row, row, st)
        k.e("s_mul_i32 %s, %s, %d\ns_lshl_b32 %s, %s, 8\ns_add_u32 %s, %s, %s\ns_add_u32 %s, %s, 0x%x",
            st, self.s_c, 32 * 24576, s2, row, st, st, s2, st, st, KVP_OFF)
        ad, x = k.v(), k.v(32)
        k.e("v_mul_u32_u24 %s, 24576, %s\nv_lshl_add_u32 %s, %s, 4, %s", ad, self.v_g, ad, self.v_s, ad)
        self.set_exec(0x03FF03FF03FF03FF)
        for i in range(8):
            k.e("buffer_load_dwordx4 %s, %s, %s, %s offen sc1", x[4 * i:4 * i + 4], ad, self.WS, st)
            if i < 7:
                k.e("s_add_u32 %s, %s, 98304", st, st)
        for i in range(1, 8):
            k.e("v_pk_add_f32 %s, %s, %s\nv_pk_add_f32 %s, %s, %s", x[0:2], x[0:2], x[4 * i:4 * i + 2], x[2:4], x[2:4], x[4 * i + 2:4 * i + 4])
        self.set_exec(-1)
        self.reduce2(x[0], x[1])
        self.reduce2(x[2], x[3])
        k.e("v_cvt_pk_bf16_f32 %s, %s, %s\nv_cvt_pk_bf16_f32 %s, %s, %s", x[4], x[0], x[1], x[5], x[2], x[3])
        k.e("s_mul_i32 %s, %s, 96\ns_add_u32 %s, %s, %s\ns_lshl_b32 %s, %s, 7\ns_add_u32 %s, %s, 0x%x", st, self.s_c, st, st, row, st, st, st, st, KVF_OFF)
        self.set_exec(0x3FF)
        k.e("buffer_store_dwordx2 %s, %s, %s, %s offen sc1", x[4:6], self.v_l8, self.WS, st)
        self.set_exec(-1)
        k.drain_vm()
        k.cond_end()
        k.put(skip)
        k.release(ad, x, row)
        k.barrier()
        lab = self.wave_is(0)
        k.e("s_add_u32 %s, %s, 0x1000", st, self.s_kvflag)
        self.set_flag(st, False)
        self.close(lab)

    def attn_out(self):
        k = self.k
        st = self.s_tmp
        k.e("s_lshl_b32 %s, %s, 7\ns_add_u32 %s, %s, 0x%x", st, self.s_c, st, st, FL_KVF)
        self.poll(self.v_l4, st, 32)
        self.stamp("kvf seen")
        x, ad, la, t, u = k.v(8), k.v(2, align=1), k.v(2, align=1), k.v(), k.v()
        k.e("s_lshl_b32 %s, %s, 2\ns_add_u32 %s, %s, %s\ns_mul_i32 %s, %s, 3072\ns_add_u32 %s, %s, 0x%x", st, self.s_c, st, st, self.s_wv, st, st, st, st, KVF_OFF)
        k.e("s_mul_i32 %s, %s, 1920\ns_add_u32 %s, %s, %d", self.s_tmp2, self.s_wv, self.s_tmp2, self.s_tmp2, KVL)
        for n in range(2):
            k.e("v_add_u32 %s, %d, %s\nv_mul_u32_u24 %s, 13108, %s\nv_lshrrev_b32 %s, 16, %s", t, 64 * n, self.v_lane, u, t, u, u)
            k.e("v_lshl_add_u32 %s, %s, 4, %s", la[n], t, self.s_tmp2)
            k.e("v_mul_u32_u24 %s, 48, %s\nv_lshl_add_u32 %s, %s, 4, %s", u, u, ad[n], t, u)
        k.e("buffer_load_dwordx4 %s, %s, %s, %s offen sc1", x[0:4], ad[0], self.WS, st)
        self.set_exec((1 << 41) - 1)
        k.e("buffer_load_dwordx4 %s, %s, %s, %s offen sc1", x[4:8], ad[1], self.WS, st)
        k.e("ds_write_b128 %s, %s", la[1], x[4:8])
        self.set_exec(-1)
        k.e("ds_write_b128 %s, %s", la[0], x[0:4])
        k.e("v_mul_u32_u24 %s, 24, %s\nv_add_u32 %s, %s, %s\nv_mul_u32_u24 %s, 80, %s\nv_add_u32 %s, %d, %s",
            t, self.v_g, t, t, self.v_cc, t, t, t, KVL, t)
        k.e("v_cmp_eq_u32 vcc, %s, %s\nv_mov_b32 %s, %d\nv_cndmask_b32 %s, %s, %s, vcc", self.v_g, self.v_r, u, ZERO, u, u, t)
        k.barrier()
        fr, d, ob = [k.v(4) for _ in range(30)], k.v(24), k.v(10)
        order = [(t6, j) for j in range(5) for t6 in (5, 0, 1, 2, 3, 4)]
        for i, (t6, j) in enumerate(order):
            k.e("ds_read_b128 %s, %s offset:%d", fr[i], u, 320 * t6 + 16 * j)
        for i, (t6, j) in enumerate(order):
            self.mfma(d[4 * t6:4 * t6 + 4], fr[i], self.phq[4 * j:4 * j + 4], 0 if j == 0 else None)
        k.e("v_add_f32 %s, 0x358637bd, %s\nv_rcp_f32 %s, %s", d[20], d[20], d[20], d[20])
        for i in range(10):
            k.e("v_pk_mul_f32 %s, %s, %s op_sel_hi:[1,0]", d[2 * i:2 * i + 2], d[2 * i:2 * i + 2], d[20:22])
        self.dump("o", d[0:20])
        for i in range(10):
            k.e("v_cvt_pk_bf16_f32 %s, %s, %s", ob[i], d[2 * i], d[2 * i + 1])
        self.store_slice(ob, O_OFF)
        k.drain_vm()
        self.set_flag(self.s_oflag, True)
        k.release(x, ad, la, t, u, d, ob, self.phq, *fr)
        self.stamp("o stored")

    def store_slice(self, ob, base):
        k = self.k
        st = self.s_tmp
        k.e("s_lshl_b32 %s, %s, 3\ns_add_u32 %s, %s, %s\ns_lshl_b32 %s, %s, 2\ns_add_u32 %s, %s, %s\ns_mul_i32 %s, %s, 2560\ns_add_u32 %s, %s, 0x%x",
            st, self.s_G, st, st, self.s_c, st, st, st, st, self.s_wv, st, st, st, st, base)

        def fn(fl):
            k.e("buffer_store_dwordx4 %s, %s, %s, %s offen%s", ob[0:4], self.v_l16, self.WS, st, fl)
            k.e("buffer_store_dwordx4 %s, %s, %s, %s offen offset:1024%s", ob[4:8], self.v_l16, self.WS, st, fl)
            k.e("buffer_store_dwordx2 %s, %s, %s, %s offen offset:2048%s", ob[8:10], self.v_l8, self.WS, st, fl)
        self.shared_stores(fn)

    def load_frags(self, dests, base, per_wave, first):
        k = self.k
        st = self.s_tmp
        k.e("s_lshl_b32 %s, %s, 2\ns_add_u32 %s, %s, %s\ns_mul_i32 %s, %s, %d\ns_add_u32 %s, %s, 0x%x",
            st, self.s_c, st, st, self.s_wv, st, st, per_wave * 1024, st, st, base + first * 1024)
        for i, d in enumerate(dests):
            if i and i % 4 == 0:
                k.e("s_add_u32 %s, %s, 4096", st, st)
            k.e("buffer_load_dwordx4 %s, %s, %s, %s offen offset:%d sc1", d, self.v_l16, self.WS, st, 1024 * (i % 4))

    def poll_group(self, kind, mine):
        k = self.k
        st = self.s_tmp
        k.e("s_mul_i32 %s, %s, 384\ns_add_u32 %s, %s, 0x%x", st, self.s_G, st, st, FLAG_OFF + 128 * kind)
        if mine:
            k.e("s_lshl_b32 %s, %s, 5\ns_add_u32 %s, %s, %s", self.s_tmp2, self.s_wv, st, st, self.s_tmp2)
        self.poll(self.v_l4, st, 8 if mine else 32)

    def ksplit_gemm(self, wfr, nks, load_tt, RED):
        k = self.k
        acc = k.v(40)
        stt, wa = k.s(4, align=1), k.v(3, align=1)
        for i in range(4):
            k.e("s_add_u32 %s, %s, %d\ns_and_b32 %s, %s, 3", stt[i], self.s_wv, 1 + i, stt[i], stt[i])
        for i in range(3):
            k.e("s_mul_i32 %s, %s, 15360\ns_add_u32 %s, %s, %d\nv_add_u32 %s, %s, %s",
                self.s_tmp, stt[i], self.s_tmp, self.s_tmp, RED + (2 - i) * 5120, wa[i], self.s_tmp, self.v_l16)
        nbuf = 4 if nks == 5 else 2
        bufs = [k.v(4 * nks) for _ in range(nbuf)]
        for i in range(nbuf):
            load_tt(bufs[i], stt[i])
        for i in range(4):
            a = acc[20 * (i & 1):20 * (i & 1) + 20]
            b = bufs[i % nbuf]
            pend = []
            if i:
                prev = acc[20 * ((i - 1) & 1):20 * ((i - 1) & 1) + 20]
                pend = [(wa[i - 1], prev[4 * t:4 * t + 4], 1024 * t) for t in range(5)]
            for ks in range(nks):
                for t in range(5):
                    self.mfma(a[4 * t:4 * t + 4], wfr[5 * ks + t], b[4 * ks:4 * ks + 4], 0 if ks == 0 else None)
                    if pend and ks * 5 + t >= 8 and (ks * 5 + t) % 3 == 2:
                        k.e("ds_write_b128 %s, %s offset:%d", *pend.pop(0))
            assert not pend
            if i + nbuf < 4:
                load_tt(b, stt[i + nbuf])
        k.release(*bufs)
        rd = k.v(60)
        k.e("s_mul_i32 %s, %s, 15360\ns_add_u32 %s, %s, %d\nv_add_u32 %s, %s, %s",
            self.s_tmp, self.s_wv, self.s_tmp, self.s_tmp, RED, wa[0], self.s_tmp, self.v_l16)
        k.barrier()
        for i in range(15):
            k.e("ds_read_b128 %s, %s offset:%d", rd[4 * i:4 * i + 4], wa[0], 1024 * i)
        out = acc[20:40]
        for sl in range(3):
            for i in range(10):
                k.e("v_pk_add_f32 %s, %s, %s", out[2 * i:2 * i + 2], out[2 * i:2 * i + 2], rd[20 * sl + 2 * i:20 * sl + 2 * i + 2])
        k.release(rd, stt, wa, acc[0:20])
        return out

    def add_packed(self, acc, pk):
        k = self.k
        tp = k.v(4)
        for i in range(10):
            p = tp[2 * (i & 1):2 * (i & 1) + 2]
            k.e("v_lshlrev_b32 %s, 16, %s\nv_and_b32 %s, 0xffff0000, %s", p[0], pk[i], p[1], pk[i])
            k.e("v_pk_add_f32 %s, %s, %s\nv_cvt_pk_bf16_f32 %s, %s, %s", p, p, acc[2 * i:2 * i + 2], pk[i], p[0], p[1])
        k.release(tp)

    def phase_b(self):
        k = self.k
        self.poll_group(0, True)
        self.stamp("o seen")
        sb = k.s()
        k.e("s_lshl_b32 %s, %s, 2\ns_add_u32 %s, %s, %s\ns_mul_i32 %s, %s, 20480\ns_add_u32 %s, %s, 0x%x",
            sb, self.s_G, sb, sb, self.s_wv, sb, sb, sb, sb, O_OFF)

        def load_tt(b, tt):
            st, s2 = self.s_tmp, self.s_tmp2
            k.e("s_mul_i32 %s, %s, 2560\ns_add_u32 %s, %s, %s\ns_add_u32 %s, %s, 10240", st, tt, st, st, sb, s2, st)
            for so, o4, o2 in ((st, 0, 8), (s2, 12, 10)):
                k.e("buffer_load_dwordx4 %s, %s, %s, %s offen sc1", b[o4:o4 + 4], self.v_l16, self.WS, so)
                k.e("buffer_load_dwordx4 %s, %s, %s, %s offen offset:1024 sc1", b[o4 + 4:o4 + 8], self.v_l16, self.WS, so)
                k.e("buffer_load_dwordx2 %s, %s, %s, %s offen offset:2048 sc1", b[o2:o2 + 2], self.v_l8, self.WS, so)
        acc = self.ksplit_gemm(self.wo, 5, load_tt, RED_B)
        self.stamp("wo gemm")
        self.dump("attn", acc)
        self.add_packed(acc, self.xr)
        self.hb = hb = self.xr
        a, b, ones = acc[0], acc[1], acc[2]
        k.e("v_mov_b32 %s, 0\nv_mov_b32 %s, 0\nv_mov_b32 %s, 0x3f803f80", a, b, ones)
        for i in range(10):
            k.e("v_dot2c_f32_bf16 %s, %s, %s\nv_dot2c_f32_bf16 %s, %s, %s", a, hb[i], ones, b, hb[i], hb[i])
        self.reduce2(a, b)
        self.store_slice(hb, H_OFF)
        st = self.s_tmp
        k.e("s_lshl_b32 %s, %s, 3\ns_add_u32 %s, %s, %s\ns_lshl_b32 %s, %s, 2\ns_add_u32 %s, %s, %s\ns_lshl_b32 %s, %s, 7\ns_add_u32 %s, %s, 0x%x",
            st, self.s_G, st, st, self.s_c, st, st, st, st, self.s_wv, st, st, st, st, HS_OFF)
        self.set_exec(0xFFFF)
        self.shared_stores(lambda fl: k.e("buffer_store_dwordx2 %s, %s, %s, %s offen%s", acc[0:2], self.v_l8, self.WS, st, fl))
        self.set_exec(-1)
        k.drain_vm()
        k.e("s_add_u32 %s, %s, 128", st, self.s_oflag)
        self.set_flag(st, True)
        k.release(acc, sb)
        self.stamp("h stored")

    def colsum(self):
        k = self.k
        self.cs = k.v(12)
        ones = k.v(4)
        for i in range(4):
            k.e("v_mov_b32 %s, 0x3f803f80", ones[i])
        for ks in range(20):
            for t in range(3):
                self.mfma(self.cs[4 * t:4 * t + 4], self.w1[3 * ks + t], ones, 0 if ks == 0 else None)
        k.release(ones)

    def phase_c(self, refill):
        k = self.k
        self.poll_group(1, False)
        self.stamp("h seen")
        st, s2 = self.s_tmp, self.s_tmp2
        k.e("s_mul_i32 %s, %s, 81920\ns_add_u32 %s, %s, %s\ns_add_u32 %s, %s, 0x%x", st, self.s_G, st, st, self.s_m0w, st, st, H_OFF)
        tq = []
        for q in range(4):
            for n in range(5):
                k.e("s_add_u32 m0, %s, %d", self.s_m0w, HL + 20480 * q + 1024 * n)
                t = k.e("buffer_load_dwordx4 %s, %s, %s offen sc1 lds", self.v_l16, self.WS, st)
                k.e("s_add_u32 %s, %s, %d", st, st, 1024 if n < 4 else 20480 - 4096)
            tq.append(t)
        sx = k.v(16)
        ad = k.v()
        k.e("v_lshlrev_b32 %s, 7, %s\nv_lshl_add_u32 %s, %s, 3, %s", ad, self.v_g, ad, self.v_s, ad)
        k.e("s_lshl_b32 %s, %s, 12\ns_add_u32 %s, %s, 0x%x", st, self.s_G, st, st, HS_OFF)
        for p in range(8):
            k.e("buffer_load_dwordx2 %s, %s, %s, %s offen offset:%d sc1", sx[2 * p:2 * p + 2], ad, self.WS, st, 512 * p)
        k.release(ad)
        acc, bb = k.v(48), k.v(32)
        a16, a8 = k.v(2, align=1), k.v(2, align=1)
        k.e("v_add_u32 %s, %d, %s\nv_add_u32 %s, %d, %s", a16[0], HL, self.v_l16, a16[1], HL + 40960, self.v_l16)
        k.e("v_add_u32 %s, %d, %s\nv_add_u32 %s, %d, %s", a8[0], HL, self.v_l8, a8[1], HL + 40960, self.v_l8)

        def reads(ks, tt):
            q, j = divmod(ks, 5)
            d = bb[16 * (ks & 1) + 4 * tt:16 * (ks & 1) + 4 * tt + 4]
            o = 20480 * (q & 1) + 2560 * tt
            if j == 2:
                k.e("ds_read_b64 %s, %s offset:%d\nds_read_b64 %s, %s offset:%d", d[0:2], a8[q >> 1], o + 2048, d[2:4], a8[q >> 1], o + 10240 + 2048)
            else:
                k.e("ds_read_b128 %s, %s offset:%d", d, a16[q >> 1], o + (0, 1024, 0, 10240, 11264)[j])

        for ks in range(20):
            if ks % 5 == 0:
                k.wait_vm(tq[ks // 5])
                k.barrier()
                for tt in range(4):
                    reads(ks, tt)
            for tt in range(4):
                if ks % 5 < 4:
                    reads(ks + 1, tt)
                for t in range(3):
                    self.mfma(acc[12 * tt + 4 * t:12 * tt + 4 * t + 4], self.w1[3 * ks + t],
                              bb[16 * (ks & 1) + 4 * tt:16 * (ks & 1) + 4 * tt + 4], 0 if ks == 0 else None)
            refill(ks)
        self.stamp("ffn1 gemm")
        k.release(bb, a16, a8)
        for p in range(1, 8):
            k.e("v_pk_add_f32 %s, %s, %s", sx[0:2], sx[0:2], sx[2 * p:2 * p + 2])
        self.mean_rstd(sx[0], sx[1], sx[2])
        for src, o in ((sx[0], 0), (sx[2], 1)):
            r0, r1, r2, r3 = (sx[4 + 2 * i + o] for i in range(4))
            k.e("v_mov_b32 %s, %s\nv_mov_b32 %s, %s\nv_permlane32_swap_b32 %s, %s", r0, src, r2, src, r0, r2)
            k.e("v_mov_b32 %s, %s\nv_mov_b32 %s, %s\nv_permlane16_swap_b32 %s, %s\nv_permlane16_swap_b32 %s, %s", r1, r0, r3, r2, r0, r1, r2, r3)
        fb = k.v(24)
        for tt in range(4):
            mr = sx[4 + 2 * tt:6 + 2 * tt]
            for i in range(6):
                x = acc[12 * tt + 2 * i:12 * tt + 2 * i + 2]
                k.e("v_pk_fma_f32 %s, %s, %s, %s op_sel_hi:[1,0,1] neg_lo:[1,0,0] neg_hi:[1,0,0]", x, self.cs[2 * i:2 * i + 2], mr, x)
                k.e("v_pk_mul_f32 %s, %s, %s op_sel:[0,1] op_sel_hi:[1,1]", x, x, mr)
                k.e("v_cvt_pk_bf16_f32 %s, %s, %s\nv_pk_max_i16 %s, %s, 0", fb[6 * tt + i], x[0], x[1], fb[6 * tt + i], fb[6 * tt + i])
        self.dump("f", fb)
        k.e("s_lshl_b32 %s, %s, 3\ns_add_u32 %s, %s, %s\ns_mul_i32 %s, %s, 24576\ns_add_u32 %s, %s, 0x%x", st, self.s_G, st, st, self.s_c, st, st, st, st, F_OFF)
        s4, s8 = k.s(), k.s()
        k.e("s_lshl_b32 %s, %s, 10\ns_add_u32 %s, %s, %s", s4, self.s_wv, s4, s4, st)
        k.e("s_lshr_b32 %s, %s, 1\ns_lshl_b32 %s, %s, 10\ns_and_b32 %s, %s, 1\ns_lshl_b32 %s, %s, 3\ns_add_u32 %s, %s, %s\ns_add_u32 %s, %s, %s\ns_add_u32 %s, %s, 4096",
            s8, self.s_wv, s8, s8, s2, self.s_wv, s2, s2, s8, s8, s2, s8, s8, st, s8, s8)

        def fn(fl):
            for tt in range(4):
                k.e("s_add_u32 %s, %s, %d\ns_add_u32 %s, %s, %d", st, s4, 6144 * tt, s2, s8, 6144 * tt)
                k.e("buffer_store_dwordx4 %s, %s, %s, %s offen%s", fb[6 * tt:6 * tt + 4], self.v_l16, self.WS, st, fl)
                k.e("buffer_store_dwordx2 %s, %s, %s, %s offen%s", fb[6 * tt + 4:6 * tt + 6], self.v_l16, self.WS, s2, fl)
        self.shared_stores(fn)
        k.drain_vm()
        k.e("s_add_u32 %s, %s, 256", st, self.s_oflag)
        self.set_flag(st, True)
        k.release(acc, sx, fb, self.cs, s4, s8)
        self.stamp("f stored")

    def phase_d(self):
        k = self.k
        self.poll_group(2, True)
        self.stamp("f seen")
        sb = k.s()
        k.e("s_lshl_b32 %s, %s, 2\ns_add_u32 %s, %s, %s\ns_mul_i32 %s, %s, 49152\ns_add_u32 %s, %s, 0x%x",
            sb, self.s_G, sb, sb, self.s_wv, sb, sb, sb, sb, F_OFF)

        def load_tt(b, tt):
            st = self.s_tmp
            k.e("s_mul_i32 %s, %s, 6144\ns_add_u32 %s, %s, %s", st, tt, st, st, sb)
            for ks in range(12):
                if ks in (4, 6, 10):
                    k.e("s_add_u32 %s, %s, %d", st, st, 4096 if ks != 6 else 24576 - 4096)
                k.e("buffer_load_dwordx4 %s, %s, %s, %s offen offset:%d sc1", b[4 * ks:4 * ks + 4], self.v_l16, self.WS, st, 1024 * ((ks % 6) % 4))
        acc = self.ksplit_gemm(self.w2, 12, load_tt, RED_D)
        self.stamp("ffn2 gemm")
        self.add_packed(acc, self.hb)
        t = acc[0]
        st = self.s_tmp
        k.e("v_mul_u32_u24 %s, 1280, %s\nv_mad_u32_u24 %s, %s, 40, %s", t, self.v_s, t, self.v_g, t)
        k.e("s_lshl_b32 %s, %s, 2\ns_add_u32 %s, %s, %s\ns_mul_i32 %s, %s, 20480\ns_mul_i32 %s, %s, 160\ns_add_u32 %s, %s, %s",
            st, self.s_G, st, st, self.s_wv, st, st, self.s_tmp2, self.s_c, st, st, self.s_tmp2)
        hb = self.hb
        k.e("buffer_store_dwordx4 %s, %s, %s, %s offen", hb[0:4], t, self.OUT, st)
        k.e("buffer_store_dwordx4 %s, %s, %s, %s offen offset:16", hb[4:8], t, self.OUT, st)
        k.e("buffer_store_dwordx2 %s, %s, %s, %s offen offset:32", hb[8:10], t, self.OUT, st)
        k.release(acc, sb)

    def build(self):
        k = self.k
        self.prologue()
        self.phase_a()
        self.init_check()
        k.e("s_mov_b32 %s, 0x%x", self.s_tmp, FL_RL)
        self.poll(self.v_l16, self.s_tmp, N_UNITS // 4, wide=True)
        self.stamp("init seen")
        ag = [k.a(4) for _ in range(64)]
        self.wo = ag[:25]
        self.load_frags(self.wo, WO_OFF, 25, 0)
        self.kv_reduce()
        self.stamp("kv reduced")
        self.attn_out()
        extra = [k.v(4) for _ in range(21)]
        self.w1 = ag[25:] + extra
        self.load_frags(self.w1, W1_OFF, 60, 0)
        self.phase_b()
        self.colsum()
        self.w2 = ag[:25] + self.w1[:35]
        self.load_frags(self.w2[:25], W2_OFF, 60, 0)

        def refill(ks):
            lo, hi = 3 * ks, min(3 * ks + 3, 35)
            if lo < hi:
                self.load_frags(self.w2[25 + lo:25 + hi], W2_OFF, 60, 25 + lo)
        self.phase_c(refill)
        k.release(*extra)
        self.phase_d()
        if self.stamps:
            k.drain_vm()
            self.stamp("end")
            st = self.s_tmp
            k.e("s_lshl_b32 %s, s2, 2\ns_add_u32 %s, %s, %s\ns_lshl_b32 %s, %s, 8\ns_add_u32 %s, %s, 0x%x", st, st, st, self.s_wv, st, st, st, st, STAMP_OFF)
            k.e("buffer_store_dword %s, %s, %s, %s offen", self.v_stamp, self.v_l4, self.WS, st)
        k.put("L_end")
        k.e("s_endpgm")
        return HEAD + k.text() + TAIL


if __name__ == "__main__":
    out = sys.argv[1] if len(sys.argv) > 1 else "cdna_kernels/%s.s" % NAME
    g = Gen()
    open(out, "w").write(g.build())
    print("written", out, "instructions", len(g.k.ins), "hi", g.k.hi)
```

```python
import re

_REG = re.compile(r"^(-?)(?:abs\()?\|?([vas])(?:(\d+)|\[(\d+):(\d+)\])\)?\|?$")
TRANS = ("v_exp_f32", "v_log_f32", "v_rcp_f32", "v_rsq_f32", "v_sqrt_f32")


def regs_of(tok):
    tok = tok.strip()
    if tok in ("vcc", "exec"):
        return {(tok, 0)}
    if tok == "m0":
        return {("m0", 0)}
    m = _REG.match(tok)
    if not m:
        return set()
    kind = m.group(2)
    if m.group(3) is not None:
        return {(kind, int(m.group(3)))}
    return {(kind, i) for i in range(int(m.group(4)), int(m.group(5)) + 1)}


class R:
    def __init__(self, kind, base, n):
        self.kind, self.base, self.n = kind, base, n

    def __getitem__(self, i):
        if isinstance(i, slice):
            a = i.start or 0
            b = self.n if i.stop is None else i.stop
            assert 0 <= a < b <= self.n, (a, b, self.n)
            return R(self.kind, self.base + a, b - a)
        assert 0 <= i < self.n, (i, self.n)
        return R(self.kind, self.base + i, 1)

    def __str__(self):
        if self.n == 1:
            return "%s%d" % (self.kind, self.base)
        return "%s[%d:%d]" % (self.kind, self.base, self.base + self.n - 1)

    __repr__ = __str__


class Ins:
    __slots__ = ("text", "op", "cls", "defs", "uses", "srcc", "store_data", "states")

    def __init__(self, text):
        self.text = text
        self.defs, self.uses, self.srcc, self.store_data = set(), set(), set(), set()
        self.states = 1
        t = text.split(";")[0].strip()
        if not t or t.endswith(":") or t.startswith("."):
            self.op, self.cls, self.states = "", "label", 0
            return
        parts = t.split(None, 1)
        op = self.op = parts[0]
        rest = parts[1] if len(parts) > 1 else ""
        toks = [x.strip() for x in re.split(r",(?![^\[]*\])", rest)] if rest else []
        if toks:
            last = toks[-1].split()
            mods = last[1:]
            toks[-1] = last[0] if last else ""
        else:
            mods = []
        rs = [regs_of(x) for x in toks]
        allr = set().union(*rs) if rs else set()
        if op.startswith("v_mfma"):
            self.cls = "mfma"
            self.defs = rs[0]
            self.uses = rs[1] | rs[2] | rs[3]
            self.srcc = rs[3]
        elif op.startswith("v_"):
            self.cls = "valu"
            if op.startswith("v_permlane"):
                self.defs = self.uses = allr
            elif op.startswith(("v_add_co", "v_addc_co", "v_sub_co")):
                self.defs = rs[0] | rs[1]
                self.uses = set().union(*rs[2:])
            else:
                self.defs = rs[0]
                self.uses = set().union(*rs[1:]) if len(rs) > 1 else set()
                if op.startswith(("v_fmac", "v_dot2c", "v_writelane")):
                    self.uses = self.uses | rs[0]
        elif op.startswith("ds_"):
            self.cls = "ds"
            if op.startswith(("ds_read", "ds_bpermute", "ds_permute", "ds_swizzle")):
                self.defs = rs[0]
                self.uses = set().union(*rs[1:])
            else:
                self.uses = allr
        elif op.startswith(("buffer_", "global_")):
            self.cls = "vmem"
            if "lds" in mods:
                self.uses = allr | {("m0", 0)}
            elif "_load" in op:
                self.defs = rs[0]
                self.uses = set().union(*rs[1:])
            else:
                self.uses = allr
                if op.endswith(("x3", "x4")):
                    self.store_data = rs[0]
        elif op == "s_nop":
            self.cls = "nop"
            self.states = int(toks[0], 0) + 1
        elif op.startswith("s_"):
            self.cls = "salu"
            nodef = ("s_cmp", "s_cbranch", "s_branch", "s_waitcnt", "s_barrier", "s_endpgm", "s_sleep",
                     "s_setprio", "s_bitcmp", "s_setpc")
            if op.startswith(nodef):
                self.uses = allr
            else:
                self.defs = rs[0] if rs else set()
                self.uses = set().union(*rs[1:]) if len(rs) > 1 else set()
                if "saveexec" in op:
                    self.defs = self.defs | {("exec", 0)}
        else:
            raise ValueError(text)


def is_vec(r):
    return r[0] in ("v", "a")


def need(p, c):
    n = 0
    if p.cls == "valu":
        vd = {r for r in p.defs if is_vec(r)}
        sd = p.defs - vd
        if vd:
            if c.cls == "mfma" and vd & c.uses:
                n = max(n, 2)
            if c.cls == "valu" and vd & c.uses:
                if c.op.startswith("v_permlane") or "dpp" in c.text:
                    n = max(n, 2)
                if c.op.startswith(("v_readlane", "v_readfirstlane")):
                    n = max(n, 1)
                if p.op.startswith(TRANS) and not c.op.startswith(TRANS):
                    n = max(n, 1)
            if p.op.startswith("v_dot2") and vd & (c.uses | c.defs) and c.op != p.op:
                n = max(n, 3)
            if p.op.startswith(TRANS) and c.cls in ("vmem", "ds", "mfma") and vd & c.uses:
                n = max(n, 2)
        if sd:
            if c.cls in ("valu", "mfma") and sd & c.uses:
                n = max(n, 4 if c.op.startswith(("v_readlane", "v_writelane")) else 2)
            if c.cls == "vmem" and sd & c.uses:
                n = max(n, 5)
            if c.cls == "salu" and sd & c.uses:
                n = max(n, 1)
    elif p.cls == "mfma":
        big = "32x32" in p.op
        if c.cls == "mfma":
            if p.defs & (c.uses - c.srcc):
                n = max(n, 12 if big else 8)
            if p.defs & c.srcc and p.defs != c.srcc:
                n = max(n, 10 if big else 6)
            if p.defs & c.defs and p.defs != c.srcc:
                n = max(n, 12 if big else 8)
        elif c.cls in ("valu", "vmem", "ds"):
            if p.defs & (c.uses | c.defs):
                n = max(n, 12 if big else 8)
            if c.cls == "valu" and p.srcc & c.defs:
                n = max(n, 7 if big else 3)
    elif p.cls == "vmem":
        if p.store_data and p.store_data & c.defs:
            n = max(n, 2)
    elif p.cls == "salu":
        if ("m0", 0) in p.defs and ("m0", 0) in c.uses:
            n = max(n, 1)
    return n


def pad_hazards(ins):
    out = []
    branches = {}

    def shortfall(c, idx, dist):
        short = 0
        while idx >= 0 and dist < 20:
            p = out[idx]
            if p.cls == "label":
                for b in branches.get(p.text.strip()[:-1], ()):
                    short = max(short, shortfall(c, b, dist))
                if idx > 0 and out[idx - 1].op in ("s_branch", "s_endpgm"):
                    return short
            elif p.cls != "nop":
                short = max(short, need(p, c) - dist)
            dist += p.states
            idx -= 1
        return short

    for c in ins:
        if c.cls not in ("label", "nop"):
            short = shortfall(c, len(out) - 1, 0)
            while short > 0:
                k = min(short, 16)
                out.append(Ins("s_nop %d" % (k - 1)))
                short -= k
        out.append(c)
        if c.op.startswith(("s_branch", "s_cbranch")):
            branches.setdefault(c.text.split()[1], []).append(len(out) - 1)
    return out


class Queue:
    def __init__(self, name, cap):
        self.name, self.cap = name, cap
        self.q = []
        self.next = 0

    def push(self, dests):
        self.q.append([self.next, True, set(dests)])
        self.next += 1
        return self.next - 1

    def count_after(self, t):
        return sum(1 for e in self.q if e[0] > t and e[1])

    def pending(self, t):
        return any(e[0] == t for e in self.q)

    def retire(self, t):
        self.q = [e for e in self.q if e[0] > t]


class Bg:
    def __init__(self, fn, period, dests):
        self.fn, self.period, self.ticket, self.front = fn, period, None, False
        self.dests = set()
        for d in dests:
            self.dests |= regs_of(str(d))


class K:
    def __init__(self):
        self.ins = []
        self.vm = Queue("vmcnt", 63)
        self.ds = Queue("lgkmcnt", 15)
        self.free = {"v": [True] * 256, "a": [True] * 256, "s": [True] * 102}
        self.nlabel = 0
        self.cond = []
        self.hi = {"v": 0, "a": 0, "s": 0}
        self.clock = 0
        self.last_mfma = -16
        self.bg = []
        self.bg_next = 0
        self.in_bg = False
        self.topup = 0

    def alloc(self, kind, n, align=None, at=None):
        align = align or (1 if n == 1 else 2)
        f = self.free[kind]
        if at is not None:
            assert all(f[at:at + n]), (kind, at, n)
            b = at
        else:
            for b in range(0, len(f) - n + 1, align):
                if all(f[b:b + n]):
                    break
            else:
                raise RuntimeError("out of %s registers (need %d)" % (kind, n))
        for i in range(b, b + n):
            f[i] = False
        self.hi[kind] = max(self.hi[kind], b + n)
        return R(kind, b, n)

    def v(self, n=1, align=None, at=None):
        return self.alloc("v", n, align, at)

    def a(self, n=1, align=None, at=None):
        return self.alloc("a", n, align, at)

    def s(self, n=1, align=None, at=None):
        return self.alloc("s", n, align, at)

    def release(self, *rs):
        for r in rs:
            for i in range(r.base, r.base + r.n):
                assert not self.free[r.kind][i], r
                self.free[r.kind][i] = True

    def nfree(self, kind):
        return sum(self.free[kind])

    def _wait(self, q, t):
        if not q.pending(t):
            return
        if q is self.vm and not self.in_bg:
            while self.bg and q.count_after(t) < self.topup:
                self._bg_emit()
        n = min(q.count_after(t), q.cap)
        self.ins.append(Ins("s_waitcnt %s(%d)" % (q.name, n)))
        q.retire(t)

    def wait_vm(self, t):
        self._wait(self.vm, t)

    def wait_ds(self, t):
        self._wait(self.ds, t)

    def drain_vm(self):
        self.ins.append(Ins("s_waitcnt vmcnt(0)"))
        self.vm.q = []

    def drain_ds(self):
        self.ins.append(Ins("s_waitcnt lgkmcnt(0)"))
        self.ds.q = []

    def barrier(self, drain=True):
        if drain and self.ds.q:
            self.drain_ds()
        self.ins.append(Ins("s_barrier"))

    def e(self, text, *args):
        if args:
            text = text % args
        ticket = None
        for line in text.split("\n"):
            line = line.strip()
            if not line:
                continue
            i = Ins(line)
            touched = i.uses | i.defs
            if not self.in_bg:
                hit = [n for n, en in enumerate(self.bg) if en.dests & touched]
                if hit:
                    self.bg_flush(self.bg[max(hit)])
            for q in (self.vm, self.ds):
                hit = [en[0] for en in q.q if en[2] & touched]
                if hit:
                    self._wait(q, max(hit))
            self.ins.append(i)
            self._advance(i)
            if i.cls == "vmem":
                ticket = self.vm.push(i.defs)
            elif i.cls == "ds":
                ticket = self.ds.push(i.defs)
        return ticket

    def _advance(self, i):
        if i.cls == "mfma":
            start = max(self.clock, self.last_mfma + 16)
            self.last_mfma = start
            self.clock = start + 8
        elif i.cls != "label":
            self.clock += 8 if i.op.startswith(TRANS + ("v_permlane",)) else 4 * i.states

    def bg_push(self, fn, period, dests=(), front=0):
        en = Bg(fn, period, dests)
        if front:
            pos = sum(1 for x in self.bg if x.front)
            en.front = True
            self.bg.insert(pos, en)
        else:
            self.bg.append(en)
        return en

    def _bg_emit(self):
        en = self.bg.pop(0)
        self.in_bg = True
        en.ticket = en.fn()
        self.in_bg = False
        self.bg_next = max(self.bg_next, self.clock - en.period) + en.period

    def tick(self):
        if self.bg and self.clock >= self.bg_next:
            self._bg_emit()

    def bg_now(self, n):
        for _ in range(min(n, len(self.bg))):
            self._bg_emit()

    def bg_flush(self, en):
        while en.ticket is None:
            self._bg_emit()

    def bg_restart(self, delay=0):
        self.bg_next = self.clock + delay

    def wait_bg(self, en):
        self.bg_flush(en)
        self.wait_vm(en.ticket)

    def label(self, stem="L"):
        self.nlabel += 1
        return "%s_%d" % (stem, self.nlabel)

    def put(self, label):
        self.ins.append(Ins(label + ":"))

    def cond_begin(self):
        self.cond.append(tuple((q.next, [list(e) for e in q.q]) for q in (self.vm, self.ds)))

    def cond_end(self):
        saved = self.cond.pop()
        for q, (mark, before) in zip((self.vm, self.ds), saved):
            inner = [e for e in q.q if e[0] >= mark]
            for e in inner:
                e[1] = False
            q.q = before + inner

    def either(self, cond_scc1, other):
        la, lb = self.label("L_alt"), self.label("L_join")
        snap = tuple((q.next, [list(e) for e in q.q]) for q in (self.vm, self.ds))
        self.e("s_cbranch_scc0 %s", la)
        r = cond_scc1()
        after = tuple((q.next, [e[0] for e in q.q]) for q in (self.vm, self.ds))
        self.e("s_branch %s", lb)
        self.put(la)
        for q, (nx, en) in zip((self.vm, self.ds), snap):
            q.next, q.q = nx, en
        other()
        assert after == tuple((q.next, [e[0] for e in q.q]) for q in (self.vm, self.ds))
        self.put(lb)
        return r

    def text(self):
        out = []
        for i in pad_hazards(self.ins):
            out.append(i.text if i.cls == "label" else "    " + i.text)
        return "\n".join(out)
```

```python
import sys
from emit import K, R

NAME = "sequential_preLN__linear_kernel_hedgehog__dense_activation_relu__prompt"

WO_OFF, W1_OFF, W2_OFF, WQ_OFF = 0x0, 0x100000, 0x300000, 0x500000
KVP_OFF, KVF_OFF, HS_OFF = 0x600000, 0xC00000, 0xC20000
KVH = 1792
FLAG_OFF = 0xC40000
O_OFF, H_OFF, F_OFF = 0xD00000, 0x1000000, 0x1300000
STAMP_OFF, DUMP_OFF = 0x1A00000, 0x2000000
WS_BYTES = 0x1900000
FAR = 0x40000000

SLOT = [81920, 102400, 0, 20480, 122880, 143360]
XS = 0
RLS = 122880
TR, TRP = 40960, 544
ZERO, WPH = 75776, 77824
KVS = 20480
KVL = TR
RED_B, RED_D = 81920, 0
HL = 81920
LDS_BYTES = 163840
MAT = [1280, 2560]
SPIN = 1 << 18

HEAD = """; Fused pre-LN hedgehog linear attention + ReLU FFN, one persistent launch.
; 256 workgroups: 32 row blocks of 64 tokens x 8 column slices (4 heads / 80 / 192 columns).
; @launch grid=(256,1,1) block=(256,1,1) lds=%d
.amdgcn_target "amdgcn-amd-amdhsa--gfx950"
.text
.globl %s_kernel
.p2align 8
.type %s_kernel,@function
%s_kernel:
""" % (LDS_BYTES, NAME, NAME, NAME)

TAIL = """
.section .rodata,"a"
.p2align 6
.amdhsa_kernel %s_kernel
  .amdhsa_next_free_vgpr 512
  .amdhsa_next_free_sgpr 102
  .amdhsa_accum_offset 256
  .amdhsa_group_segment_fixed_size 0
  .amdhsa_kernarg_size 80
  .amdhsa_user_sgpr_count 2
  .amdhsa_user_sgpr_kernarg_segment_ptr 1
  .amdhsa_system_sgpr_workgroup_id_x 1
.end_amdhsa_kernel
""" % NAME


class Gen:
    def __init__(self, stamps=False, dumps=(), force_slow=False, **opt):
        self.k = K()
        self.o = dict(codepf=1, wpf=1, touch=1, rot=1, q0=8, s1_at=12, s1_use=13, fin_at=14, pw=100, pre_o=5, pre_h=5, pre_f=5,
                      stop_b=400, fine=0, top=10, norl=0, noclear=0, look=2)
        assert set(opt) <= set(self.o), opt
        self.o.update(opt)
        self.stamps, self.dumps, self.force_slow = stamps, set(dumps), force_slow
        self.stamp_names = []
        self.dump_info = {}

    def mfma(self, d, a, b, c=None):
        self.k.e("v_mfma_f32_16x16x32_bf16 %s, %s, %s, %s", d, a, b, d if c is None else c)

    def srd(self, dst, ptr, nbytes):
        self.k.e("s_mov_b32 %s, %s\ns_mov_b32 %s, %s\ns_mov_b32 %s, 0x%x\ns_mov_b32 %s, 0x20000",
                 dst[0], ptr[0], dst[1], ptr[1], dst[2], nbytes, dst[3])

    def stamp(self, name):
        if not self.stamps:
            return
        k = self.k
        k.e("s_memrealtime %s", self.s_t)
        k.drain_ds()
        k.e("v_writelane_b32 %s, %s, %d", self.v_stamp, self.s_t[0], len(self.stamp_names))
        self.stamp_names.append(name)

    def dump(self, name, regs):
        if name not in self.dumps:
            return
        k = self.k
        idx = len(self.dump_info)
        self.dump_info[name] = (idx, regs.n)
        st, t = self.s_tmp, k.v()
        k.e("s_lshl_b32 %s, s2, 2\ns_add_u32 %s, %s, %s\ns_mul_i32 %s, %s, %d\ns_add_u32 %s, %s, 0x%x",
            st, st, st, self.s_wv, st, st, 128 * 256, st, st, DUMP_OFF + idx * 0x2000000)
        k.e("v_lshlrev_b32 %s, 2, %s", t, self.v_lane)
        for i in range(regs.n):
            k.e("buffer_store_dword %s, %s, %s, %s offen", regs[i], t, self.WS, st)
            k.e("s_add_u32 %s, %s, 256", st, st)
        k.drain_vm()
        k.release(t)

    def set_exec(self, mask):
        k = self.k
        if -1 <= mask <= 64:
            k.e("s_mov_b64 exec, %d", mask)
        else:
            k.e("s_mov_b32 exec_lo, 0x%x\ns_mov_b32 exec_hi, 0x%x", mask & 0xFFFFFFFF, mask >> 32)

    def wave_is(self, n):
        k = self.k
        lab = k.label("L_w")
        k.e("s_cmp_lg_u32 %s, %d\ns_cbranch_scc1 %s", self.s_wv, n, lab)
        k.cond_begin()
        return lab

    def close(self, lab):
        self.k.cond_end()
        self.k.put(lab)

    def shared_stores(self, fn):
        k = self.k
        k.e("s_cmp_lg_u32 %s, 0", self.s_fast)
        return k.either(lambda: fn(""), lambda: fn(" sc1"))

    def poll(self, voff, soff, nlanes, wide=False):
        k = self.k
        lab, out = k.label("L_poll"), k.label("L_pollout")
        t = k.v(4 if wide else 1)
        if nlanes < 64:
            self.set_exec((1 << nlanes) - 1)
        k.e("s_mov_b32 %s, 0", self.s_spin)
        k.put(lab)
        k.e("buffer_load_%s %s, %s, %s, %s offen sc1", "dwordx4" if wide else "dword", t, voff, self.WS, soff)
        k.e("s_add_u32 %s, %s, 1\ns_cmp_gt_u32 %s, %d\ns_cbranch_scc1 %s", self.s_spin, self.s_spin, self.s_spin, SPIN, out)
        k.drain_vm()
        if wide:
            k.e("v_min3_u32 %s, %s, %s, %s\nv_min_u32 %s, %s, %s", t[0], t[0], t[1], t[2], t[0], t[0], t[3])
        k.e("v_cmp_eq_u32 vcc, 0, %s\ns_cbranch_vccnz %s", t[0], lab)
        k.put(out)
        k.drain_vm()
        if nlanes < 64:
            self.set_exec(-1)
        k.release(t)

    def set_flag(self, soff, local):
        k = self.k
        self.set_exec(1)
        fn = lambda fl: k.e("buffer_store_dword %s, %s, %s, %s offen%s", self.v_one, self.v_zero, self.WS, soff, fl)
        if local:
            self.shared_stores(fn)
        else:
            fn(" sc1")
        self.set_exec(-1)

    def reduce2(self, a, b):
        k = self.k
        t = k.v()
        k.e("v_permlane32_swap_b32 %s, %s\nv_add_f32 %s, %s, %s\nv_mov_b32 %s, %s", a, b, a, a, b, t, a)
        k.e("v_permlane16_swap_b32 %s, %s\nv_add_f32 %s, %s, %s\nv_mov_b32 %s, %s", a, t, a, a, t, b, a)
        k.e("v_permlane32_swap_b32 %s, %s", a, b)
        k.release(t)

    def prologue(self):
        k = self.k
        k.s(3, at=0)
        self.X, self.WQKV, self.WS, self.DBG = (k.s(4, at=4 + 4 * i) for i in range(4))
        self.OUT, self.WPHI, self.RL = (k.s(4, at=20 + 4 * i) for i in range(3))
        self.ptr = k.s(20, at=32)
        for n in ("wv", "c", "G", "fast", "spin", "tmp", "tmp2", "m0w", "wcol", "bg", "cw", "gcw"):
            setattr(self, "s_" + n, k.s())
        self.s_t = k.s(2)
        self.s_L = k.s(2)
        k.v(at=0)
        k.e("s_cmp_ge_u32 s2, 256\ns_cbranch_scc1 L_end")
        k.e("s_load_dwordx16 %s, s[0:1], 0\ns_load_dwordx4 %s, s[0:1], 64", self.ptr[0:16], self.ptr[16:20])
        for n in ("lane", "g", "s", "r", "cc", "zero", "one", "l16", "l8", "l4", "l128", "junk"):
            setattr(self, "v_" + n, k.v())
        if self.stamps:
            self.v_stamp = k.v()
            k.e("v_mov_b32 %s, 0", self.v_stamp)
        st, s2 = self.s_tmp, self.s_tmp2
        k.e("v_lshrrev_b32 %s, 6, v0\nv_and_b32 %s, 63, v0\nv_readfirstlane_b32 %s, %s",
            self.v_g, self.v_lane, self.s_wv, self.v_g)
        k.e("s_bfe_u32 %s, s2, 0x30003\ns_and_b32 %s, s2, 7\ns_lshl_b32 %s, %s, 2\ns_lshr_b32 %s, s2, 6\ns_add_u32 %s, %s, %s",
            self.s_c, self.s_G, self.s_G, self.s_G, st, self.s_G, self.s_G, st)
        k.e("v_lshlrev_b32 %s, 7, %s", self.v_l128, self.v_lane)

        xd = k.v(5, align=1)
        t, u = k.v(), k.v()
        rot = k.s()
        k.e("s_and_b32 %s, %s, %d\ns_lshl_b32 %s, %s, 7", rot, self.s_c, self.o["rot"], st, rot)
        for n in range(5):
            d = xd[n]
            k.e("v_add_u32 %s, %d, %s\nv_mul_u32_u24 %s, 205, %s\nv_lshrrev_b32 %s, 14, %s", t, 64 * n, self.v_lane, u, t, u, u)
            k.e("v_mul_u32_u24 %s, 80, %s\nv_sub_u32 %s, %s, %s\nv_xor_b32 %s, %s, %s", d, u, t, t, d, t, t, u)
            k.e("v_mul_u32_u24 %s, 1280, %s\nv_lshl_add_u32 %s, %s, 4, %s\nv_xor_b32 %s, %s, %s", u, u, d, t, u, d, st, d)
        sx, sm = k.s(2, align=1), k.s(2, align=1)
        k.e("s_mul_i32 %s, %s, 10240\ns_mul_i32 %s, %s, 20480\ns_add_u32 %s, %s, %s\ns_sub_u32 %s, %s, %s\ns_add_u32 %s, %s, 10240",
            rot, rot, st, self.s_wv, sm[0], st, rot, sm[1], st, rot, sm[1], sm[1])
        k.e("s_mul_i32 %s, %s, 81920\ns_add_u32 %s, %s, %s\ns_add_u32 %s, %s, %s", st, self.s_G, sx[0], sm[0], st, sx[1], sm[1], st)
        k.release(rot)

        k.e("s_waitcnt lgkmcnt(0)")
        p = self.ptr
        self.srd(self.X, p[0:2], 2621440)
        self.srd(self.WQKV, p[2:4], 2457600)
        self.stamp("start")
        self.early_prefetch(t)

        def x_dma(m):
            if m & 1:
                k.e("s_add_u32 %s, %s, 5120", sx[m >> 1], sx[m >> 1])
            for n in range(5):
                src = xd[n]
                if m:
                    k.e("v_xor_b32 %s, %d, %s", t, 64 * m, src)
                    src = t
                k.e("s_add_u32 m0, %s, %d", sm[m >> 1], XS + (5 * (m & 1) + n) * 1024)
                self.t_x = k.e("buffer_load_dwordx4 %s, %s, %s offen lds", src, self.X, sx[m >> 1])
        x_dma(0)
        x_dma(1)

        self.srd(self.WPHI, p[4:6], 25600)
        self.srd(self.OUT, p[14:16], 2621440)
        self.srd(self.DBG, p[16:18], 256)
        self.srd(self.WS, p[18:20], 0x10000000 if (self.stamps or self.dumps) else WS_BYTES)
        k.e("v_lshrrev_b32 %s, 4, %s\nv_and_b32 %s, 15, %s\nv_bfe_u32 %s, %s, 2, 2\nv_and_b32 %s, 3, %s",
            self.v_g, self.v_lane, self.v_s, self.v_lane, self.v_r, self.v_lane, self.v_cc, self.v_lane)
        k.e("v_mov_b32 %s, 0\nv_mov_b32 %s, 1", self.v_zero, self.v_one)
        k.e("v_lshlrev_b32 %s, 4, %s\nv_lshlrev_b32 %s, 3, %s\nv_lshlrev_b32 %s, 2, %s",
            self.v_l16, self.v_lane, self.v_l8, self.v_lane, self.v_l4, self.v_lane)
        k.e("s_mov_b32 %s, 0x3fb8aa3b\ns_mov_b32 %s, 0x3fb8aa3b", self.s_L[0], self.s_L[1])
        k.e("s_mul_i32 %s, %s, 5120", self.s_m0w, self.s_wv)
        k.e("s_lshl_b32 %s, %s, 2\ns_add_u32 %s, %s, %s\ns_lshl_b32 %s, %s, 5\ns_add_u32 %s, %s, %s",
            self.s_cw, self.s_c, self.s_cw, self.s_cw, self.s_wv, self.s_gcw, self.s_G, self.s_gcw, self.s_gcw, self.s_cw)
        k.e("s_mul_i32 %s, %s, 122880\ns_mul_i32 %s, %s, 160\ns_add_u32 %s, %s, %s",
            self.s_wcol, self.s_wv, st, self.s_c, self.s_wcol, self.s_wcol, st)
        self.v_wd = k.v(5, align=1)
        w = k.v()
        for n in range(5):
            d = self.v_wd[n]
            k.e("v_add_u32 %s, %d, %s\nv_mul_u32_u24 %s, 6554, %s\nv_lshrrev_b32 %s, 16, %s", t, 64 * n, self.v_lane, u, t, u, u)
            k.e("v_mul_u32_u24 %s, 10, %s\nv_sub_u32 %s, %s, %s", d, u, t, t, d)
            k.e("v_and_b32 %s, 0x13, %s\nv_bfe_u32 %s, %s, 2, 1\nv_lshl_or_b32 %s, %s, 3, %s", d, u, w, u, d, w, d)
            k.e("v_bfe_u32 %s, %s, 3, 1\nv_lshl_or_b32 %s, %s, 2, %s", w, u, d, w, d)
            k.e("v_mul_u32_u24 %s, 3840, %s\nv_lshl_add_u32 %s, %s, 4, %s", d, d, d, t, d)
        k.release(w)
        self.relayout_setup()
        self.kv_addresses()
        x_dma(2)
        x_dma(3)
        k.release(t, u, xd, sx, sm)
        self.stamp("x issued")
        self.clears()

        self.v_wphi = k.v(4)
        self.v_wpa = k.v()
        k.e("v_lshlrev_b32 %s, 4, v0\ns_mul_i32 %s, %s, 3200\nv_add_u32 %s, %s, %s", self.v_wpa, st, self.s_c, self.v_wpa, st, self.v_wpa)
        k.e("v_cmp_gt_u32 vcc, 200, v0\nv_mov_b32 %s, 0x%x\nv_cndmask_b32 %s, %s, %s, vcc", self.v_wphi[0], FAR, self.v_wpa, self.v_wphi[0], self.v_wpa)
        k.bg_push(lambda: k.e("buffer_load_dwordx4 %s, %s, %s, 0 offen", self.v_wphi, self.v_wpa, self.WPHI), 60, [self.v_wphi])
        self.relayout_load()

    def kv_addresses(self):
        k = self.k
        st, s2 = self.s_tmp, self.s_tmp2
        self.s_kvp, self.s_kvrow, self.s_kvf = k.s(), k.s(), k.s()
        self.v_hi41, self.v_lo5 = k.v(), k.v()
        t = k.v()
        k.e("v_mov_b32 %s, 0x%x\nv_cmp_gt_u32 vcc, 41, %s\nv_cndmask_b32 %s, %s, %s, vcc", t, FAR, self.v_lane, self.v_hi41, t, self.v_l16)
        k.e("v_cmp_gt_u32 vcc, 5, %s\nv_cndmask_b32 %s, %s, %s, vcc", self.v_lane, self.v_lo5, t, self.v_l16)
        k.release(t)
        k.e("s_lshl_b32 %s, %s, 5\ns_add_u32 %s, %s, %s\ns_lshl_b32 %s, %s, 2\ns_add_u32 %s, %s, %s\ns_mul_i32 %s, %s, %d\ns_add_u32 %s, %s, 0x%x",
            st, self.s_c, st, st, self.s_G, st, st, st, st, self.s_wv, st, st, KVH, self.s_kvp, st, KVP_OFF)
        k.e("s_and_b32 %s, %s, 7\ns_mul_i32 %s, %s, 3\ns_add_u32 %s, %s, %s\ns_mul_i32 %s, %s, 80", st, self.s_G, st, st, st, st, self.s_wv, s2, st)
        k.e("s_cmp_ge_u32 %s, 21\ns_cselect_b32 %s, 0x%x, %s\ns_cmp_eq_u32 %s, 3\ns_cselect_b32 %s, 0x%x, %s", st, s2, FAR, s2, self.s_wv, s2, FAR, s2)
        k.e("s_lshr_b32 %s, %s, 3\ns_mul_i32 %s, %s, %d\ns_add_u32 %s, %s, %s", st, self.s_G, st, st, KVH, self.s_kvrow, st, s2)
        k.e("s_mul_i32 %s, %s, %d\ns_add_u32 %s, %s, %s\ns_add_u32 %s, %s, 0x%x", st, self.s_c, 4 * KVH, st, st, self.s_kvrow, self.s_kvf, st, KVF_OFF)

    def clears(self):
        k = self.k
        st = self.s_tmp
        self.s_oflag = k.s()
        k.e("s_mul_i32 %s, %s, 384\ns_lshl_b32 %s, %s, 2\ns_add_u32 %s, %s, %s\ns_add_u32 %s, %s, 0x%x",
            st, self.s_G, self.s_oflag, self.s_cw, st, st, self.s_oflag, self.s_oflag, st, FLAG_OFF)
        self.set_exec(7)
        k.e("buffer_store_dword %s, %s, %s, %s offen sc1", self.v_zero, self.v_l128, self.WS, self.s_oflag)
        self.set_exec(-1)
        if self.o["noclear"]:
            return
        p = k.v(4)
        for i in range(4):
            k.e("v_mov_b32 %s, -1", p[i])
        k.e("buffer_store_dwordx4 %s, %s, %s, %s offen sc1", p, self.v_l16, self.WS, self.s_kvp)
        k.e("buffer_store_dwordx4 %s, %s, %s, %s offen offset:1024 sc1", p, self.v_hi41, self.WS, self.s_kvp)
        k.e("buffer_store_dwordx4 %s, %s, %s, %s offen sc1", p, self.v_lo5, self.WS, self.s_kvf)
        k.release(p)

    def early_prefetch(self, t):
        k = self.k
        st = self.s_tmp
        if self.o["codepf"]:
            code = self.RL
            k.e("s_getpc_b64 %s\ns_and_b32 %s, %s, 0xffffff80\ns_mov_b32 %s, L_end-L_pc+256\ns_mov_b32 %s, 0x20000", code[0:2], code[0], code[0], code[2], code[3])
            k.put("L_pc")
            k.e("s_lshr_b32 %s, s2, 3\ns_lshl_b32 %s, %s, 2\ns_add_u32 %s, %s, %s\ns_lshl_b32 %s, %s, 7", st, st, st, st, st, self.s_wv, st, st)
            k.e("v_lshlrev_b32 %s, 14, %s", t, self.v_lane)
            self.set_exec(7)
            k.e("buffer_load_dword %s, %s, %s, %s offen", self.v_junk, t, code, st)
            k.vm.q[-1][2] = set()
        if self.o["wpf"]:
            k.e("s_lshl_b32 %s, s2, 2\ns_add_u32 %s, %s, %s\ns_mul_i32 %s, %s, %d", st, st, st, self.s_wv, st, st, 19 * 128)
            self.set_exec((1 << 19) - 1)
            k.e("buffer_load_dword %s, %s, %s, %s offen", self.v_junk, self.v_l128, self.WQKV, st)
            k.vm.q[-1][2] = set()
        self.set_exec(-1)

    def touch_lines(self, base, per_wave_lines):
        k = self.k
        if not self.o["touch"]:
            return
        st = self.s_tmp
        k.e("s_mul_i32 %s, %s, %d\ns_add_u32 %s, %s, 0x%x", st, self.s_gcw, per_wave_lines * 128, st, st, base)
        self.set_exec((1 << per_wave_lines) - 1)
        k.e("buffer_load_dword %s, %s, %s, %s offen sc1", self.v_junk, self.v_l128, self.WS, st)
        k.vm.q[-1][2] = set()
        self.set_exec(-1)

    def relayout_setup(self):
        k = self.k
        for n in ("cpr", "magic", "pitch", "b0", "dl", "col", "dst", "big", "row", "tst", "wst"):
            setattr(self, "s_r" + n, k.s())
        u, a, b, c2 = "s2", self.s_tmp, self.s_tmp2, k.s()
        hf = k.s()
        l_w2, l_w1, l_oh, l_go, l_wq = (k.label("L_rl") for _ in range(5))
        k.e("s_cmp_ge_u32 %s, 216\ns_cbranch_scc1 %s", u, l_wq)
        k.e("s_cmp_ge_u32 %s, 136\ns_cbranch_scc1 %s\ns_cmp_ge_u32 %s, 40\ns_cbranch_scc1 %s", u, l_w1, u, l_w2)
        p = self.ptr

        def five_wide():
            k.e("s_mov_b32 %s, 40\ns_mov_b32 %s, 1639\ns_mov_b32 %s, 1280\ns_mul_i32 %s, %s, 640\ns_mov_b32 %s, 3072",
                self.s_rcpr, self.s_rmagic, self.s_rpitch, self.s_rcol, hf, self.s_rbig)
            k.e("s_mov_b32 %s, 640\ns_mov_b32 %s, 8\ns_mov_b32 %s, 160", self.s_rrow, self.s_rtst, self.s_rwst)

        self.srd(self.RL, p[6:8], 819200)
        k.e("s_mul_i32 %s, %s, 205\ns_lshr_b32 %s, %s, 11\ns_mul_i32 %s, %s, 10\ns_sub_u32 %s, %s, %s",
            a, u, a, a, b, a, b, u, b)
        k.e("s_and_b32 %s, %s, 1\ns_lshr_b32 %s, %s, 1", hf, b, b, b)
        five_wide()
        k.e("s_lshl_b32 %s, %s, 2\ns_add_u32 %s, %s, %s\ns_lshl_b32 %s, %s, 2\ns_add_u32 %s, %s, %s",
            c2, hf, c2, c2, self.s_wv, c2, c2, c2, c2, a)
        k.e("s_mul_i32 %s, %s, 5\ns_add_u32 %s, %s, %s\ns_mul_i32 %s, %s, 5120\ns_add_u32 %s, %s, 0x%x",
            c2, c2, c2, c2, b, c2, c2, self.s_rdst, c2, WO_OFF)
        k.e("s_branch %s", l_oh)

        k.put(l_w2)
        self.srd(self.RL, p[12:14], 1966080)
        k.e("s_sub_u32 %s, %s, 40\ns_mul_i32 %s, %s, 171\ns_lshr_b32 %s, %s, 12\ns_mul_i32 %s, %s, 24\ns_sub_u32 %s, %s, %s",
            c2, u, a, c2, a, a, b, a, b, c2, b)
        k.e("s_and_b32 %s, %s, 1\ns_lshr_b32 %s, %s, 1", hf, b, b, b)
        five_wide()
        k.e("s_lshl_b32 %s, %s, 2\ns_add_u32 %s, %s, %s\ns_lshl_b32 %s, %s, 2\ns_add_u32 %s, %s, %s",
            c2, hf, c2, c2, self.s_wv, c2, c2, c2, c2, a)
        k.e("s_mul_i32 %s, %s, 12\ns_add_u32 %s, %s, %s\ns_mul_i32 %s, %s, 5120\ns_add_u32 %s, %s, 0x%x",
            c2, c2, c2, c2, b, c2, c2, self.s_rdst, c2, W2_OFF)
        k.e("s_lshl_b32 %s, %s, 1\ns_cmp_ge_u32 %s, 6\ns_cselect_b32 %s, 6, 0\ns_addc_u32 %s, %s, 0\ns_sub_u32 %s, %s, %s",
            a, a, b, c2, a, a, b, b, c2)
        k.e("s_mul_i32 %s, %s, 192\ns_mul_i32 %s, %s, 48\ns_mul_i32 %s, %s, 96\ns_sub_u32 %s, %s, 352",
            a, a, c2, b, hf, b, hf, hf)
        k.e("s_cmp_ge_u32 %s, 4\ns_cselect_b32 %s, %s, %s\ns_cselect_b32 %s, 48, 16\ns_add_u32 %s, %s, %s",
            b, c2, hf, c2, self.s_rdl, a, a, c2)
        k.e("s_lshl_b32 %s, %s, 2\ns_add_u32 %s, %s, %s\ns_branch %s", c2, self.s_wv, self.s_rb0, a, c2, l_go)

        k.put(l_wq)
        self.srd(self.RL, p[2:4], 2457600)
        k.e("s_sub_u32 %s, %s, 216\ns_and_b32 %s, %s, 1\ns_lshr_b32 %s, %s, 1", b, u, hf, b, b, b)
        five_wide()
        k.e("s_mov_b32 %s, 3840\ns_mov_b32 %s, 4", self.s_rpitch, self.s_rdl)
        k.e("s_lshl_b32 %s, %s, 2\ns_add_u32 %s, %s, %s\ns_mul_i32 %s, %s, 20\ns_add_u32 %s, %s, %s", c2, hf, c2, c2, self.s_wv, c2, c2, c2, c2, b)
        k.e("s_mul_i32 %s, %s, 5120\ns_add_u32 %s, %s, 0x%x", c2, c2, self.s_rdst, c2, WQ_OFF)
        k.e("s_lshl_b32 %s, %s, 2\ns_add_u32 %s, %s, %s\ns_lshl_b32 %s, %s, 3\ns_branch %s", b, b, b, b, self.s_wv, self.s_rb0, b, l_go)

        k.put(l_w1)
        self.srd(self.RL, p[10:12], 1966080)
        k.e("s_sub_u32 %s, %s, 136\ns_and_b32 %s, %s, 3\ns_lshr_b32 %s, %s, 2", c2, u, hf, c2, c2, c2)
        k.e("s_mov_b32 %s, 48\ns_mov_b32 %s, 1366\ns_mov_b32 %s, 3072\ns_mul_i32 %s, %s, 768\ns_mov_b32 %s, 61440",
            self.s_rcpr, self.s_rmagic, self.s_rpitch, self.s_rcol, hf, self.s_rbig)
        k.e("s_mov_b32 %s, 768\ns_mov_b32 %s, 32\ns_mov_b32 %s, 192", self.s_rrow, self.s_rtst, self.s_rwst)
        k.e("s_lshl_b32 %s, %s, 2\ns_add_u32 %s, %s, %s\ns_mul_i32 %s, %s, 40\ns_add_u32 %s, %s, %s",
            hf, hf, hf, hf, self.s_wv, hf, hf, hf, hf, c2)
        k.e("s_mul_i32 %s, %s, 3072\ns_add_u32 %s, %s, 0x%x", hf, hf, self.s_rdst, hf, W1_OFF)
        k.e("s_mul_i32 %s, %s, 205\ns_lshr_b32 %s, %s, 10\ns_mul_i32 %s, %s, 5\ns_sub_u32 %s, %s, %s",
            a, c2, a, a, b, a, b, c2, b)

        k.put(l_oh)
        k.e("s_mul_i32 %s, %s, 160\ns_lshl_b32 %s, %s, 3\ns_add_u32 %s, %s, %s", a, a, c2, b, a, a, c2)
        k.e("s_cmp_ge_u32 %s, 3\ns_cselect_b32 %s, 56, 0\ns_add_u32 %s, %s, %s", b, c2, a, a, c2)
        k.e("s_cmp_eq_u32 %s, 2\ns_cselect_b32 %s, 80, 4", b, self.s_rdl)
        k.e("s_mul_i32 %s, %s, 20\ns_add_u32 %s, %s, %s", c2, self.s_wv, self.s_rb0, a, c2)

        k.put(l_go)
        t, pl, ch = k.v(), k.v(), k.v()
        self.v_rl = k.v(6, align=1)
        for n in range(6):
            d = self.v_rl[n]
            k.e("v_add_u32 %s, %d, %s\nv_mul_u32_u24 %s, %s, %s\nv_lshrrev_b32 %s, 16, %s", t, 64 * n, self.v_lane, pl, self.s_rmagic, t, pl, pl)
            k.e("v_mul_u32_u24 %s, %s, %s\nv_sub_u32 %s, %s, %s", ch, self.s_rcpr, pl, ch, t, ch)
            k.e("v_lshrrev_b32 %s, 2, %s\nv_and_b32 %s, 3, %s\nv_mad_u32_u24 %s, %s, %s, %s\nv_add_u32 %s, %s, %s",
                t, pl, pl, pl, t, t, self.s_rdl, pl, t, self.s_rb0, t)
            k.e("v_mul_u32_u24 %s, %s, %s\nv_lshl_add_u32 %s, %s, 4, %s", t, self.s_rpitch, t, d, ch, t)
        self.s_rcol6, self.s_rm0 = self.s_rmagic, self.s_rpitch
        k.e("s_cmp_eq_u32 %s, 40\ns_cselect_b32 %s, 0x%x, %s", self.s_rcpr, self.s_rcol6, FAR, self.s_rcol)
        k.e("s_mul_i32 %s, %s, 6144\ns_add_u32 %s, %s, %d", self.s_rm0, self.s_wv, self.s_rm0, self.s_rm0, RLS)
        k.release(t, pl, ch, c2, hf, self.s_rb0, self.s_rdl)

    def relayout_load(self):
        k = self.k

        def piece(n):
            k.e("s_add_u32 m0, %s, %d", self.s_rm0, 1024 * n)
            return k.e("buffer_load_dwordx4 %s, %s, %s offen lds", self.v_rl[n], self.RL, self.s_rcol if n < 5 else self.s_rcol6)
        for n in range(6):
            self.b_rl = k.bg_push(lambda n=n: piece(n), 110)

    def relayout_store(self):
        k = self.k
        k.release(self.v_rl, self.s_rcol, self.s_rcol6, self.s_rm0)
        a0, a1 = k.v(), k.v()
        fr = k.v(24)
        st, s2 = self.s_tmp, self.s_tmp2
        k.e("s_cmp_eq_u32 %s, 40\ns_cselect_b32 %s, 40, 8", self.s_rcpr, st)
        k.e("v_mul_u32_u24 %s, 6144, %s\nv_mad_u32_u24 %s, %s, %s, %s\nv_mad_u32_u24 %s, %s, %s, %s",
            a0, self.v_g, a0, self.v_r, self.s_rrow, a0, a0, self.v_cc, st, a0)
        k.e("s_mul_i32 %s, %s, %s\ns_add_u32 %s, %s, %d\nv_add_u32 %s, %s, %s", st, self.s_rwst, self.s_wv, st, st, RLS, a0, st, a0)
        k.e("s_lshl_b32 %s, %s, 2\nv_add_u32 %s, %s, %s", st, self.s_rrow, a1, st, a0)
        for n in range(6):
            k.e("ds_read_b64_tr_b16 %s, %s\nds_read_b64_tr_b16 %s, %s", fr[4 * n:4 * n + 2], a0, fr[4 * n + 2:4 * n + 4], a1)
            if n < 5:
                k.e("v_add_u32 %s, %s, %s\nv_add_u32 %s, %s, %s", a0, self.s_rtst, a0, a1, self.s_rtst, a1)
        k.e("s_add_u32 %s, %s, %s\ns_cmp_eq_u32 %s, 40\ns_cselect_b32 %s, 0x%x, %s", st, self.s_rdst, self.s_rbig, self.s_rcpr, s2, FAR, st)
        for n in range(6 if not self.o["norl"] else 1):
            self.t_rlst = k.e("buffer_store_dwordx4 %s, %s, %s, %s offen offset:%d sc1",
                              fr[4 * n:4 * n + 4], self.v_l16, self.WS, self.s_rdst if n < 3 else (st if n < 5 else s2), 1024 * (n % 3))
        k.release(a0, a1, fr, self.s_rcpr, self.s_rdst, self.s_rbig, self.s_rrow, self.s_rtst, self.s_rwst)

    def w_dma(self, n, now=True):
        k = self.k
        if n > 14 or n in self.b_w:
            return
        sb = self.s_bg

        def piece(i):
            if n < 10:
                if i == 0:
                    k.e("s_add_u32 %s, %s, %d", sb, self.s_wcol, MAT[n // 5] + (n % 5) * 4 * 122880)
                k.e("s_add_u32 m0, %s, %d", self.s_m0w, SLOT[n % 6] + 1024 * i)
                return k.e("buffer_load_dwordx4 %s, %s, %s offen lds", self.v_wd[i], self.WQKV, sb)
            if i == 0:
                k.e("s_add_u32 %s, %s, %d\ns_add_u32 m0, %s, %d", sb, self.s_wq, 20480 * (n - 10), self.s_m0w, SLOT[n % 6])
            if i == 4:
                k.e("s_add_u32 %s, %s, 4096\ns_add_u32 m0, %s, %d", sb, sb, self.s_m0w, SLOT[n % 6] + 4096)
            return k.e("buffer_load_dwordx4 %s, %s, %s offen offset:%d sc1 lds", self.v_l16, self.WS, sb, 1024 * (i % 4))
        for i in range(5):
            self.b_w[n] = k.bg_push(lambda i=i: piece(i), 160 if n < 10 else 100)
        if now:
            k.bg_flush(self.b_w[n])

    def ln1(self):
        k = self.k
        self.xf = xf = k.v(80)
        self.xr = k.v(10)
        ad, t, u = k.v(4, align=1), k.v(), k.v()
        st = self.s_tmp
        k.e("s_mul_i32 %s, %s, 20480\nv_mul_u32_u24 %s, 1280, %s\nv_add_u32 %s, %s, %s", st, self.s_wv, u, self.v_s, u, st, u)
        k.e("v_xor_b32 %s, %s, %s\nv_lshl_add_u32 %s, %s, 4, %s", t, self.v_g, self.v_s, ad[0], t, u)
        for i in range(1, 4):
            k.e("v_xor_b32 %s, %d, %s", ad[i], 64 * i, ad[0])
        ra = k.v(5, align=1)
        k.e("s_mul_i32 %s, %s, 160", st, self.s_c)
        for i in range(5):
            k.e("v_mad_u32_u24 %s, %s, 40, %s\nv_add_u32 %s, %d, %s", t, self.v_g, st, t, 8 * i, t)
            k.e("v_lshlrev_b32 %s, 4, %s\nv_xor_b32 %s, %s, %s\nv_add_u32 %s, %s, %s", ra[i], self.v_s, t, t, ra[i], ra[i], t, u)
        k.wait_vm(self.t_x)
        self.stamp("x landed")
        k.bg_restart()
        k.bg_now(3)
        for j in range(20):
            k.e("ds_read_b128 %s, %s offset:%d", xf[4 * j:4 * j + 4], ad[j & 3], XS + 256 * (j >> 2))
        for i in range(5):
            k.e("ds_read_b64 %s, %s offset:%d", self.xr[2 * i:2 * i + 2], ra[i], XS)
        k.release(ad, ra)
        a, b, ones = k.v(), k.v(), k.v()
        k.e("v_mov_b32 %s, 0\nv_mov_b32 %s, 0\nv_mov_b32 %s, 0x3f803f80", a, b, ones)
        for i in range(80):
            k.e("v_dot2c_f32_bf16 %s, %s, %s\nv_dot2c_f32_bf16 %s, %s, %s", a, xf[i], ones, b, xf[i], xf[i])
            k.tick()
        self.reduce2(a, b)
        sc = k.v(2)
        self.mean_rstd(a, b, sc[0])
        k.e("v_mul_f32 %s, %s, %s\nv_sub_f32 %s, 0, %s", sc[1], a, sc[0], sc[1], sc[1])
        tp = k.v(8)
        for i in range(80):
            p = tp[2 * (i & 3):2 * (i & 3) + 2]
            k.e("v_lshlrev_b32 %s, 16, %s\nv_and_b32 %s, 0xffff0000, %s", p[0], xf[i], p[1], xf[i])
            k.e("v_pk_fma_f32 %s, %s, %s, %s op_sel:[0,0,1] op_sel_hi:[1,0,1]", p, p, sc, sc)
            k.e("v_cvt_pk_bf16_f32 %s, %s, %s", xf[i], p[0], p[1])
            k.tick()
        k.release(a, b, ones, sc, tp, t, u)
        self.dump("xn", xf)

    def mean_rstd(self, a, b, rstd):
        k = self.k
        k.e("v_mul_f32 %s, 0x3acccccd, %s\nv_mul_f32 %s, 0x3acccccd, %s", a, a, b, b)
        k.e("v_fma_f32 %s, -%s, %s, %s\nv_max_f32 %s, 0, %s\nv_add_f32 %s, 0x3727c5ac, %s\nv_rsq_f32 %s, %s",
            b, a, a, b, b, b, b, b, rstd, b)

    def gemm_matrix(self, n0, acc, hook):
        k = self.k
        buf = self.abuf
        last = {}

        def reads(j, t):
            n, jj = n0 + j // 4, j % 4
            d = buf[20 * (j % 3) + 4 * t:20 * (j % 3) + 4 * t + 4]
            if n >= 10:
                o = SLOT[n % 6] + jj * 5120 + 1024 * t
                last[j] = k.e("ds_read_b128 %s, %s offset:%d", d, self.v_qr[o >> 16], o & 0xFFFF)
            else:
                for e in range(2):
                    o = SLOT[n % 6] + jj * 5120 + 8 * t + 1280 * e
                    last[j] = k.e("ds_read_b64_tr_b16 %s, %s offset:%d", d[2 * e:2 * e + 2], self.v_wr[o >> 16], o & 0xFFFF)

        def enter(n):
            k.wait_bg(self.b_w[n])
            if n == 0:
                k.wait_bg(self.b_rl)
            if n == 2:
                k.wait_vm(self.t_rlst)
            k.barrier(drain=False)
            if self.o["fine"]:
                self.stamp("bar %d" % n)
            hook(n)

        enter(n0)
        for j in range(2):
            for t in range(5):
                reads(j, t)
        for j in range(20):
            if j + 2 < 20 and (j + 2) % 4 == 0:
                enter(n0 + (j + 2) // 4)
            k.wait_ds(last[j])
            for t in range(5):
                self.mfma(acc[4 * t:4 * t + 4], buf[20 * (j % 3) + 4 * t:20 * (j % 3) + 4 * t + 4],
                          self.xf[4 * j:4 * j + 4], 0 if j == 0 else None)
                if j + 2 < 20:
                    reads(j + 2, t)
                k.tick()

    def wphi_frags(self):
        k = self.k
        wf = self.wf = k.a(60, at=196)
        ad, t = k.v(), k.v()
        k.e("v_mul_u32_u24 %s, 800, %s\nv_mad_u32_u24 %s, %s, 40, %s\nv_add_u32 %s, %d, %s", t, self.v_g, t, self.v_r, t, t, WPH, t)
        k.e("v_cmp_eq_u32 vcc, %s, %s\nv_mov_b32 %s, %d\nv_cndmask_b32 %s, %s, %s, vcc", self.v_g, self.v_cc, ad, ZERO, ad, ad, t)
        for u in range(3):
            for t5 in range(5):
                d = wf[4 * (5 * u + t5):4 * (5 * u + t5) + 4]
                k.e("ds_read_b64_tr_b16 %s, %s offset:%d", d[0:2], ad, 320 * u + 8 * t5)
                if u < 2:
                    k.e("ds_read_b64_tr_b16 %s, %s offset:%d", d[2:4], ad, 320 * u + 160 + 8 * t5)
                else:
                    k.e("v_accvgpr_write_b32 %s, 0\nv_accvgpr_write_b32 %s, 0", d[2], d[3])
        k.drain_ds()
        k.release(ad, t)

    def phi(self, acc, name):
        k = self.k
        kb, wf = k.v(12), self.wf
        k.e("v_mov_b32 %s, 0\nv_mov_b32 %s, 0", kb[10], kb[11])
        k.tick()
        for i in range(10):
            k.e("v_cvt_pk_bf16_f32 %s, %s, %s", kb[i], acc[2 * i], acc[2 * i + 1])
        p = acc
        for u in range(3):
            for t in range(5):
                self.mfma(p[4 * t:4 * t + 4], wf[4 * (5 * u + t):4 * (5 * u + t) + 4], kb[4 * u:4 * u + 4], 0 if u == 0 else None)
                k.tick()
        k.release(kb)
        self.dump(name, p)
        m = k.v(2)
        k.e("v_max3_f32 %s, %s, %s, %s\nv_min3_f32 %s, %s, %s, %s", m[0], p[0], p[1], p[2], m[1], p[0], p[1], p[2])
        for i in range(3, 19, 2):
            k.e("v_max3_f32 %s, %s, %s, %s\nv_min3_f32 %s, %s, %s, %s", m[0], m[0], p[i], p[i + 1], m[1], m[1], p[i], p[i + 1])
        k.e("v_max_f32 %s, %s, %s\nv_min_f32 %s, %s, %s", m[0], m[0], p[19], m[1], m[1], p[19])
        k.e("v_pk_mul_f32 %s, %s, %s", m, m, self.s_L)
        e = k.v(40)
        for i in range(10):
            q = p[2 * i:2 * i + 2]
            k.e("v_pk_fma_f32 %s, %s, %s, %s op_sel_hi:[1,1,0] neg_lo:[0,0,1] neg_hi:[0,0,1]", e[2 * i:2 * i + 2], q, self.s_L, m)
            k.e("v_pk_fma_f32 %s, %s, %s, %s op_sel:[0,0,1] op_sel_hi:[1,1,1] neg_lo:[1,0,0] neg_hi:[1,0,0]",
                e[20 + 2 * i:22 + 2 * i], q, self.s_L, m)
            k.tick()
        for i in range(40):
            k.e("v_exp_f32 %s, %s", e[i], e[i])
            k.tick()
        sm = k.v(4)
        for h in range(2):
            s2 = sm[2 * h:2 * h + 2]
            k.e("v_pk_add_f32 %s, %s, %s", s2, e[20 * h:20 * h + 2], e[20 * h + 2:20 * h + 4])
            for i in range(2, 10):
                k.e("v_pk_add_f32 %s, %s, %s", s2, s2, e[20 * h + 2 * i:20 * h + 2 * i + 2])
        k.e("v_add_f32 %s, %s, %s\nv_add_f32 %s, %s, %s", m[0], sm[0], sm[1], m[1], sm[2], sm[3])
        k.e("v_rcp_f32 %s, %s\nv_rcp_f32 %s, %s", m[0], m[0], m[1], m[1])
        for i in range(20):
            q = e[2 * i:2 * i + 2]
            sel = "op_sel_hi:[1,0]" if i < 10 else "op_sel:[0,1] op_sel_hi:[1,1]"
            k.e("v_pk_mul_f32 %s, %s, %s %s", q, q, m, sel)
            k.tick()
        for i in range(20):
            k.e("v_cvt_pk_bf16_f32 %s, %s, %s", p[i], e[2 * i], e[2 * i + 1])
            k.tick()
        k.release(m, e, sm)
        return p

    def phase_a(self):
        k, o = self.k, self.o
        self.b_w = {}
        self.w_dma(0, now=False)
        self.w_dma(1, now=False)
        self.v_wr, self.v_qr = k.v(3, align=1), k.v(3, align=1)
        t = k.v()
        k.e("v_lshrrev_b32 %s, 1, %s\nv_lshl_add_u32 %s, %s, 4, %s\nv_and_b32 %s, 1, %s\nv_lshl_add_u32 %s, %s, 2, %s",
            t, self.v_g, self.v_wr[0], t, self.v_r, t, self.v_g, t, t, self.v_wr[0])
        self.v_tok = k.v()
        k.e("v_mov_b32 %s, %s\nv_mul_u32_u24 %s, 160, %s\nv_mad_u32_u24 %s, %s, 40, %s", self.v_tok, t, t, t, self.v_wr[0], self.v_cc, t)
        k.e("v_add_u32 %s, 0x10000, %s\nv_add_u32 %s, 0x20000, %s", self.v_wr[1], self.v_wr[0], self.v_wr[2], self.v_wr[0])
        k.e("v_mov_b32 %s, %s\nv_add_u32 %s, 0x10000, %s\nv_add_u32 %s, 0x20000, %s",
            self.v_qr[0], self.v_l16, self.v_qr[1], self.v_l16, self.v_qr[2], self.v_l16)
        self.s_wq = k.s()
        k.e("s_mul_i32 %s, %s, 102400\ns_add_u32 %s, %s, %s\ns_add_u32 %s, %s, 0x%x",
            self.s_wq, self.s_c, self.s_wq, self.s_wq, self.s_m0w, self.s_wq, self.s_wq, WQ_OFF)
        k.release(t)
        self.ln1()
        self.stamp("ln1")
        self.abuf = k.v(60)
        acc = k.v(20)
        st = self.s_tmp

        def hook(n):
            for m in range(2, o["look"] + 1):
                if n + m < 10 and (n + m < 4 or n >= 1):
                    self.w_dma(n + m)
            if n == 0:
                self.tables_to_lds()
                self.relayout_store()
            if n == 2:
                self.signal_init()
            if n == 3:
                self.wphi_frags()
            if 1 <= n <= 4:
                self.touch_lines(*((O_OFF, 20), (H_OFF, 20), (F_OFF, 48), (HS_OFF, 1))[n - 1])
            if n == o["q0"] - 2:
                self.init_load()
            if n == o["q0"]:
                self.init_check()
                self.w_dma(10)
            if n == o["s1_use"]:
                self.kv_reduce()
            if n == o["s1_at"]:
                self.kv_reduce_load()
            if n == o["fin_at"]:
                self.kv_final_load()
            if n >= 10:
                self.w_dma(n + 2)
            if n == o["fin_at"]:
                self.queue_wo()

        self.gemm_matrix(0, acc, hook)
        self.stamp("K gemm")
        self.dump("k", acc)
        k.bg_restart(300)
        self.w_dma(7, now=False)
        self.w_dma(8, now=False)
        ph = self.phi(acc, "pk")
        self.dump("phik", ph)
        t, wtr = k.v(), k.v()
        k.e("s_lshl_b32 %s, %s, 4\nv_add_u32 %s, %s, %s\nv_mul_u32_u24 %s, %d, %s", st, self.s_wv, wtr, st, self.v_s, wtr, TRP, wtr)
        k.e("v_mul_u32_u24 %s, 80, %s\nv_add_u32 %s, %s, %s", t, self.v_g, t, t, wtr)
        for i in range(5):
            k.e("ds_write_b128 %s, %s offset:%d", t, ph[4 * i:4 * i + 4], TR + 16 * i)
        self.stamp("phi k")
        k.bg_flush(self.b_w[8])
        self.w_dma(9, now=False)
        self.gemm_matrix(5, acc, hook)
        self.stamp("V gemm")
        self.dump("v", acc)
        vb = k.v(12)
        k.e("v_mov_b32 %s, 0x3f80\nv_mov_b32 %s, 0\nv_mad_u32_u24 %s, %s, 48, %s", vb[10], vb[11], t, self.v_g, wtr)
        for i in range(10):
            k.e("v_cvt_pk_bf16_f32 %s, %s, %s", vb[i], acc[2 * i], acc[2 * i + 1])
        for i in range(3):
            k.e("ds_write_b128 %s, %s offset:%d", t, vb[4 * i:4 * i + 4], TR + 320 + 16 * i)
        k.release(vb, t, wtr)
        self.kv_partial()
        self.stamp("kv partial")
        self.w_dma(11)
        self.gemm_matrix(10, acc, hook)
        self.stamp("Q gemm")
        self.dump("q", acc)
        k.release(self.abuf, self.xf, self.v_wr, self.v_qr, self.v_wd, self.s_wq)
        self.phq = self.phi(acc, "pq")
        k.release(self.wf)
        self.dump("phiq", self.phq)
        self.stamp("phi q")

    def tables_to_lds(self):
        k = self.k
        t, z = k.v(), k.v(2)
        k.e("v_lshlrev_b32 %s, 3, v0\nv_mov_b32 %s, 0\nv_mov_b32 %s, 0\nv_add_u32 %s, %d, %s", t, z[0], z[1], t, ZERO, t)
        k.e("ds_write_b64 %s, %s", t, z)
        k.e("v_lshlrev_b32 %s, 4, v0\nv_min_u32 %s, 3200, %s\nv_add_u32 %s, %d, %s", t, t, t, t, WPH, t)
        k.e("ds_write_b128 %s, %s", t, self.v_wphi)
        k.release(t, z, self.v_wphi, self.v_wpa)

    def signal_init(self):
        k = self.k
        lab = self.wave_is(0)
        t = k.v()
        st = self.s_tmp
        k.e("s_getreg_b32 %s, hwreg(HW_REG_XCC_ID, 0, 4)\ns_or_b32 %s, %s, 0x80\nv_mov_b32 %s, %s", st, st, st, t, st)
        k.e("s_and_b32 %s, s2, 7\ns_lshl_b32 %s, %s, 5\ns_lshr_b32 %s, s2, 3\ns_add_u32 %s, %s, %s",
            st, st, st, self.s_tmp2, st, st, self.s_tmp2)
        self.set_exec(1)
        k.e("buffer_store_byte %s, %s, %s, %s offen sc1", t, self.v_zero, self.DBG, st)
        self.set_exec(-1)
        k.release(t)
        self.close(lab)

    def check_loop(self, test, reload):
        k = self.k
        top, ok = k.label("L_chk"), k.label("L_ok")
        k.e("s_mov_b32 %s, 0", self.s_spin)
        k.put(top)
        test()
        k.e("s_cbranch_vccz %s\ns_add_u32 %s, %s, 1\ns_cmp_gt_u32 %s, %d\ns_cbranch_scc1 %s", ok, self.s_spin, self.s_spin, self.s_spin, SPIN, ok)
        k.cond_begin()
        reload()
        k.drain_vm()
        k.cond_end()
        k.e("s_branch %s", top)
        k.put(ok)

    def init_load(self):
        k = self.k
        if not hasattr(self, "v_init"):
            self.v_init = k.v()
        self.t_init = k.e("buffer_load_dword %s, %s, %s, 0 offen sc1", self.v_init, self.v_l4, self.DBG)

    def init_check(self):
        k = self.k
        t, u = self.v_init, k.v()
        k.wait_vm(self.t_init)
        self.check_loop(lambda: k.e("v_and_b32 %s, 0x80808080, %s\nv_cmp_ne_u32 vcc, 0x80808080, %s", u, t, u), self.init_load)
        st, s2 = self.s_tmp, self.s_tmp2
        k.e("s_lshl_b32 %s, %s, 1\nv_readlane_b32 %s, %s, %s\ns_add_u32 %s, %s, 1\nv_readlane_b32 %s, %s, %s",
            st, self.s_G, s2, t, st, st, st, self.s_fast, t, st)
        k.e("s_getreg_b32 %s, hwreg(HW_REG_XCC_ID, 0, 4)\ns_or_b32 %s, %s, 0x80\ns_mul_i32 %s, %s, 0x01010101", st, st, st, st, st)
        k.e("s_xor_b32 %s, %s, %s\ns_xor_b32 %s, %s, %s\ns_or_b32 %s, %s, %s", s2, s2, st, self.s_fast, self.s_fast, st, s2, s2, self.s_fast)
        k.e("s_cmp_eq_u32 %s, 0\ns_cselect_b32 %s, %d, 0", s2, self.s_fast, 0 if self.force_slow else 1)
        k.release(t, u)
        self.stamp("init seen")

    def kv_partial(self):
        k = self.k
        st = self.s_tmp
        aa, ab, wa, ra = k.v(), k.v(), k.v(), k.v()
        k.e("v_mul_u32_u24 %s, %d, %s\nv_lshl_add_u32 %s, %s, 3, %s", aa, TRP, self.v_tok, aa, self.v_cc, aa)
        k.e("s_mul_i32 %s, %s, 48\ns_add_u32 %s, %s, %d\nv_add_u32 %s, %s, %s", st, self.s_wv, st, st, TR + 320, ab, st, aa)
        k.e("s_mul_i32 %s, %s, 80\ns_add_u32 %s, %s, %d\nv_add_u32 %s, %s, %s", st, self.s_wv, st, st, TR, aa, st, aa)
        k.e("s_mul_i32 %s, %s, 2592\ns_add_u32 %s, %s, %d\nv_add_u32 %s, %s, %s", st, self.s_wv, st, st, KVS, ra, st, self.v_l16)
        k.e("v_mul_u32_u24 %s, 80, %s\nv_lshl_add_u32 %s, %s, 3, %s\nv_add_u32 %s, %s, %s", wa, self.v_s, wa, self.v_g, wa, wa, st, wa)
        k.barrier()
        fa, fb, d = self.abuf[0:24], self.abuf[24:40], k.v(24)
        for ks in range(2):
            for fr, ad, n in ((fa, aa, 3), (fb, ab, 2)):
                for t in range(n):
                    x = fr[4 * (n * ks + t):4 * (n * ks + t) + 4]
                    o = ks * 32 * TRP + 32 * t
                    k.e("ds_read_b64_tr_b16 %s, %s offset:%d\nds_read_b64_tr_b16 %s, %s offset:%d", x[0:2], ad, o, x[2:4], ad, o + 8 * TRP)
        order = [(2, 0), (2, 1), (0, 0), (0, 1), (1, 0), (1, 1)]
        for ks in range(2):
            for tf, td in order:
                self.mfma(d[4 * (2 * tf + td):4 * (2 * tf + td) + 4], fa[4 * (3 * ks + tf):4 * (3 * ks + tf) + 4],
                          fb[4 * (2 * ks + td):4 * (2 * ks + td) + 4], 0 if ks == 0 else None)
        pk = self.abuf[40:52]
        for i, (tf, td) in enumerate(order):
            x = d[4 * (2 * tf + td):4 * (2 * tf + td) + 4]
            k.e("v_cvt_pk_bf16_f32 %s, %s, %s\nv_cvt_pk_bf16_f32 %s, %s, %s", pk[2 * i], x[0], x[1], pk[2 * i + 1], x[2], x[3])
            k.e("ds_write_b64 %s, %s offset:%d", wa, pk[2 * i:2 * i + 2], 1280 * td + 32 * tf)
        k.e("ds_read_b128 %s, %s\nds_read_b128 %s, %s offset:1024", d[0:4], ra, d[4:8], ra)
        k.e("buffer_store_dwordx4 %s, %s, %s, %s offen sc1", d[0:4], self.v_l16, self.WS, self.s_kvp)
        k.e("buffer_store_dwordx4 %s, %s, %s, %s offen offset:1024 sc1", d[4:8], self.v_hi41, self.WS, self.s_kvp)
        k.release(aa, ab, wa, ra, d, self.v_tok, self.s_kvp)

    def poison_test(self, x, m):
        k = self.k
        k.e("v_max3_u32 %s, %s, %s, %s", m, x[0], x[1], x[2])
        for i in range(3, x.n - 1, 2):
            k.e("v_max3_u32 %s, %s, %s, %s", m, m, x[i], x[i + 1])
        k.e("v_max_u32 %s, %s, %s\nv_cmp_eq_u32 vcc, -1, %s", m, m, x[x.n - 1], m)

    def kv_reduce_load(self):
        k = self.k
        st = self.s_tmp
        if not hasattr(self, "v_kx"):
            self.v_kx, self.v_ka = k.v(16), k.v()
            t, u = self.v_kx[0], self.v_kx[1]
            k.e("v_lshrrev_b32 %s, 3, %s\nv_mul_u32_u24 %s, %d, %s\nv_and_b32 %s, 7, %s\nv_lshl_add_u32 %s, %s, 4, %s",
                t, self.v_lane, t, 4 * KVH, t, u, self.v_lane, t, u, t)
            k.e("v_cmp_gt_u32 vcc, 5, %s\nv_mov_b32 %s, 0x%x\nv_cndmask_b32 %s, %s, %s, vcc", u, u, FAR, self.v_ka, u, t)
        k.e("s_mul_i32 %s, %s, %d\ns_add_u32 %s, %s, %s\ns_add_u32 %s, %s, 0x%x", st, self.s_c, 128 * KVH, st, st, self.s_kvrow, st, st, KVP_OFF)
        for i in range(4):
            self.t_kx = k.e("buffer_load_dwordx4 %s, %s, %s, %s offen sc1", self.v_kx[4 * i:4 * i + 4], self.v_ka, self.WS, st)
            if i < 3:
                k.e("s_add_u32 %s, %s, %d", st, st, 32 * KVH)

    def kv_reduce(self):
        k = self.k
        x, m, a, p = self.v_kx, k.v(), k.v(8), k.v(4)
        k.wait_vm(self.t_kx)
        self.check_loop(lambda: self.poison_test(x, m), self.kv_reduce_load)
        self.stamp("kvp seen")
        for i in range(16):
            d = a[2 * (i & 3):2 * (i & 3) + 2] if i < 4 else p[2 * (i & 1):2 * (i & 1) + 2]
            k.e("v_lshlrev_b32 %s, 16, %s\nv_and_b32 %s, 0xffff0000, %s", d[0], x[i], d[1], x[i])
            if i >= 4:
                k.e("v_pk_add_f32 %s, %s, %s", a[2 * (i & 3):2 * (i & 3) + 2], a[2 * (i & 3):2 * (i & 3) + 2], d)
        for i in range(8):
            k.e("v_add_f32_dpp %s, %s, %s row_ror:8 row_mask:0xf bank_mask:0xf", x[i], a[i], a[i])
        for i in range(4):
            self.reduce2(x[2 * i], x[2 * i + 1])
        for i in range(4):
            k.e("v_cvt_pk_bf16_f32 %s, %s, %s", p[i], x[2 * i], x[2 * i + 1])
        k.e("buffer_store_dwordx4 %s, %s, %s, %s offen sc1", p, self.v_lo5, self.WS, self.s_kvf)
        k.release(x, m, a, p, self.v_ka, self.v_lo5, self.s_kvf, self.s_kvrow)
        self.stamp("kv reduced")

    def kv_final_load(self):
        k = self.k
        st = self.s_tmp
        if not hasattr(self, "v_fx"):
            self.v_fx = k.v(8)
        k.e("s_mul_i32 %s, %s, %d\ns_add_u32 %s, %s, 0x%x", st, self.s_cw, KVH, st, st, KVF_OFF)
        k.e("buffer_load_dwordx4 %s, %s, %s, %s offen sc1", self.v_fx[0:4], self.v_l16, self.WS, st)
        self.t_fx = k.e("buffer_load_dwordx4 %s, %s, %s, %s offen offset:1024 sc1", self.v_fx[4:8], self.v_hi41, self.WS, st)

    def attn_out(self):
        k = self.k
        st = self.s_tmp
        x, la, t, u = self.v_fx, k.v(), k.v(), k.v()
        k.e("s_lshl_b32 %s, %s, 11\ns_add_u32 %s, %s, %d\nv_add_u32 %s, %s, %s", st, self.s_wv, st, st, KVL, la, st, self.v_l16)
        k.e("v_mul_u32_u24 %s, 80, %s\nv_lshl_add_u32 %s, %s, 11, %s\nv_add_u32 %s, %d, %s", t, self.v_cc, t, self.v_g, t, t, KVL, t)
        k.e("v_cmp_eq_u32 vcc, %s, %s\nv_mov_b32 %s, %d\nv_cndmask_b32 %s, %s, %s, vcc", self.v_g, self.v_r, u, ZERO, u, u, t)
        k.wait_vm(self.t_fx)
        self.check_loop(lambda: self.poison_test(x, t), self.kv_final_load)
        self.stamp("kvf seen")
        k.e("ds_write_b128 %s, %s\nds_write_b128 %s, %s offset:1024", la, x[0:4], la, x[4:8])
        k.barrier()
        fr, d, ob = [k.v(4) for _ in range(30)], k.v(24), k.v(10)
        order = [(t6, j) for j in range(5) for t6 in (5, 0, 1, 2, 3, 4)]
        rd = lambda i: k.e("ds_read_b128 %s, %s offset:%d", fr[i], u, 320 * order[i][0] + 16 * order[i][1])
        for i in range(12):
            rd(i)
        for i, (t6, j) in enumerate(order):
            self.mfma(d[4 * t6:4 * t6 + 4], fr[i], self.phq[4 * j:4 * j + 4], 0 if j == 0 else None)
            if i + 12 < 30:
                rd(i + 12)
        k.e("v_add_f32 %s, 0x358637bd, %s\nv_rcp_f32 %s, %s", d[20], d[20], d[20], d[20])
        for i in range(10):
            k.e("v_pk_mul_f32 %s, %s, %s op_sel_hi:[1,0]", d[2 * i:2 * i + 2], d[2 * i:2 * i + 2], d[20:22])
        self.dump("o", d[0:20])
        for i in range(10):
            k.e("v_cvt_pk_bf16_f32 %s, %s, %s", ob[i], d[2 * i], d[2 * i + 1])
        self.store_slice(ob, O_OFF)
        k.drain_vm()
        self.set_flag(self.s_oflag, True)
        k.release(x, la, t, u, d, ob, self.phq, self.v_hi41, *fr)
        self.stamp("o stored")

    def store_slice(self, ob, base):
        k = self.k
        st = self.s_tmp
        k.e("s_mul_i32 %s, %s, 2560\ns_add_u32 %s, %s, 0x%x", st, self.s_gcw, st, st, base)

        def fn(fl):
            k.e("buffer_store_dwordx4 %s, %s, %s, %s offen%s", ob[0:4], self.v_l16, self.WS, st, fl)
            k.e("buffer_store_dwordx4 %s, %s, %s, %s offen offset:1024%s", ob[4:8], self.v_l16, self.WS, st, fl)
            k.e("buffer_store_dwordx2 %s, %s, %s, %s offen offset:2048%s", ob[8:10], self.v_l8, self.WS, st, fl)
        self.shared_stores(fn)

    def queue_frags(self, stream, dests, first):
        k = self.k

        def piece(i, d):
            if i and i % 4 == 0:
                k.e("s_add_u32 %s, %s, 4096", stream, stream)
            return k.e("buffer_load_dwordx4 %s, %s, %s, %s offen offset:%d sc1", d, self.v_l16, self.WS, stream, 1024 * (i % 4))
        for i, d in enumerate(dests):
            k.bg_push(lambda i=first + i, d=d: piece(i, d), self.o["pw"], [d])

    def stream_base(self, base, per_wave):
        k = self.k
        r = k.s()
        k.e("s_mul_i32 %s, %s, %d\ns_add_u32 %s, %s, 0x%x", r, self.s_cw, per_wave * 1024, r, r, base)
        return r

    def queue_wo(self):
        k = self.k
        self.wo = [k.a(4, at=4 * i) for i in range(25)]
        self.s_wo = self.stream_base(WO_OFF, 25)
        k.bg_restart(200)
        self.queue_frags(self.s_wo, self.wo, 0)

    def poll_group(self, kind, mine):
        k = self.k
        st = self.s_tmp
        k.e("s_mul_i32 %s, %s, 384\ns_add_u32 %s, %s, 0x%x", st, self.s_G, st, st, FLAG_OFF + 128 * kind)
        if mine:
            k.e("s_lshl_b32 %s, %s, 5\ns_add_u32 %s, %s, %s", self.s_tmp2, self.s_wv, st, st, self.s_tmp2)
        self.poll(self.v_l4, st, 8 if mine else 32)

    def ksplit_gemm(self, wfr, nks, load_tt, RED, stop):
        k = self.k
        acc = k.v(40)
        nbuf = 4 if nks == 5 else 2
        bufs = [k.v(4 * nks) for _ in range(nbuf)]
        stt, wa = self.s_tt, k.v(3, align=1)

        def queue(i):
            for fn, d in load_tt(bufs[i % nbuf], i):
                k.bg_push(fn, 75, [d], front=(nks == 5 or i == 0))
        for i in range(nbuf):
            queue(i)
        k.bg_now(12)
        for i in range(3):
            k.e("s_mul_i32 %s, %s, 15360\ns_add_u32 %s, %s, %d\nv_add_u32 %s, %s, %s",
                self.s_tmp, stt[i], self.s_tmp, self.s_tmp, RED + (2 - i) * 5120, wa[i], self.s_tmp, self.v_l16)
        k.bg_restart(300)
        for i in range(4):
            k.topup = self.o["top"] if (i < 2 or not stop) else 0
            a = acc[20 * (i & 1):20 * (i & 1) + 20]
            b = bufs[i % nbuf]
            pend = []
            if i:
                prev = acc[20 * ((i - 1) & 1):20 * ((i - 1) & 1) + 20]
                pend = [(wa[i - 1], prev[4 * t:4 * t + 4], 1024 * t) for t in range(5)]
            for ks in range(nks):
                for t in range(5):
                    self.mfma(a[4 * t:4 * t + 4], wfr[5 * ks + t], b[4 * ks:4 * ks + 4], 0 if ks == 0 else None)
                    if pend and ks * 5 + t >= 8 and (ks * 5 + t) % 3 == 2:
                        k.e("ds_write_b128 %s, %s offset:%d", *pend.pop(0))
                    elif (4 - i) * nks * 80 - (ks * 5 + t) * 16 > stop:
                        k.tick()
            assert not pend
            if i + nbuf < 4:
                queue(i + nbuf)
        k.topup = 0
        k.release(*bufs)
        rd = k.v(60)
        k.e("s_mul_i32 %s, %s, 15360\ns_add_u32 %s, %s, %d\nv_add_u32 %s, %s, %s",
            self.s_tmp, self.s_wv, self.s_tmp, self.s_tmp, RED, wa[0], self.s_tmp, self.v_l16)
        k.barrier()
        for i in range(15):
            k.e("ds_read_b128 %s, %s offset:%d", rd[4 * i:4 * i + 4], wa[0], 1024 * i)
        out = acc[20:40]
        for sl in range(3):
            for i in range(10):
                k.e("v_pk_add_f32 %s, %s, %s", out[2 * i:2 * i + 2], out[2 * i:2 * i + 2], rd[20 * sl + 2 * i:20 * sl + 2 * i + 2])
        k.release(rd, wa, acc[0:20])
        return out

    def tile_bases(self, base, per_wave, per_tile, second):
        k = self.k
        sb = k.s(8, align=1)
        st = self.s_tmp
        k.e("s_lshl_b32 %s, %s, 2\ns_add_u32 %s, %s, %s\ns_mul_i32 %s, %s, %d\ns_add_u32 %s, %s, 0x%x",
            st, self.s_G, st, st, self.s_wv, st, st, per_wave, st, st, base)
        for i in range(4):
            k.e("s_mul_i32 %s, %s, %d\ns_add_u32 %s, %s, %s\ns_add_u32 %s, %s, %d",
                sb[2 * i], self.s_tt[i], per_tile, sb[2 * i], sb[2 * i], st, sb[2 * i + 1], sb[2 * i], second)
        return sb

    def add_packed(self, acc, pk):
        k = self.k
        tp = k.v(4)
        for i in range(10):
            p = tp[2 * (i & 1):2 * (i & 1) + 2]
            k.e("v_lshlrev_b32 %s, 16, %s\nv_and_b32 %s, 0xffff0000, %s", p[0], pk[i], p[1], pk[i])
            k.e("v_pk_add_f32 %s, %s, %s\nv_cvt_pk_bf16_f32 %s, %s, %s", p, p, acc[2 * i:2 * i + 2], pk[i], p[0], p[1])
        k.release(tp)

    def phase_b(self):
        k = self.k
        k.bg_now(self.o["pre_o"])
        self.s_tt = k.s(4, align=1)
        for i in range(4):
            k.e("s_add_u32 %s, %s, %d\ns_and_b32 %s, %s, 3", self.s_tt[i], self.s_wv, 1 + i, self.s_tt[i], self.s_tt[i])
        sb = self.tile_bases(O_OFF, 20480, 2560, 10240)
        self.poll_group(0, True)
        self.stamp("o seen")

        def load_tt(b, i):
            ld = lambda w, d, v, so, off: (lambda: k.e("buffer_load_dwordx%d %s, %s, %s, %s offen offset:%d sc1", w, d, v, self.WS, so, off), d)
            A, B = sb[2 * i], sb[2 * i + 1]
            return [ld(4, b[0:4], self.v_l16, A, 0), ld(4, b[4:8], self.v_l16, A, 1024), ld(2, b[8:10], self.v_l8, A, 2048),
                    ld(2, b[10:12], self.v_l8, B, 2048), ld(4, b[12:16], self.v_l16, B, 0), ld(4, b[16:20], self.v_l16, B, 1024)]
        acc = self.ksplit_gemm(self.wo, 5, load_tt, RED_B, self.o["stop_b"])
        self.stamp("wo gemm")
        self.dump("attn", acc)
        self.add_packed(acc, self.xr)
        self.hb = hb = self.xr
        a, b, ones = acc[0], acc[1], acc[2]
        k.e("v_mov_b32 %s, 0\nv_mov_b32 %s, 0\nv_mov_b32 %s, 0x3f803f80", a, b, ones)
        for i in range(10):
            k.e("v_dot2c_f32_bf16 %s, %s, %s\nv_dot2c_f32_bf16 %s, %s, %s", a, hb[i], ones, b, hb[i], hb[i])
        self.reduce2(a, b)
        self.store_slice(hb, H_OFF)
        st = self.s_tmp
        k.e("s_lshl_b32 %s, %s, 7\ns_add_u32 %s, %s, 0x%x", st, self.s_gcw, st, st, HS_OFF)
        self.set_exec(0xFFFF)
        self.shared_stores(lambda fl: k.e("buffer_store_dwordx2 %s, %s, %s, %s offen%s", acc[0:2], self.v_l8, self.WS, st, fl))
        self.set_exec(-1)
        k.drain_vm()
        k.e("s_add_u32 %s, %s, 128", st, self.s_oflag)
        self.set_flag(st, True)
        k.release(acc, sb)
        self.stamp("h stored")

    def phase_c(self, refill):
        k = self.k
        k.bg_now(self.o["pre_h"])
        st, s2 = self.s_tmp, self.s_tmp2
        sh = k.s()
        k.e("s_mul_i32 %s, %s, 81920\ns_add_u32 %s, %s, %s\ns_add_u32 %s, %s, 0x%x", sh, self.s_G, sh, sh, self.s_m0w, sh, sh, H_OFF)
        sx, ad, ss = k.v(16), k.v(), k.s()
        k.e("v_lshlrev_b32 %s, 7, %s\nv_lshl_add_u32 %s, %s, 3, %s", ad, self.v_g, ad, self.v_s, ad)
        k.e("s_lshl_b32 %s, %s, 12\ns_add_u32 %s, %s, 0x%x", ss, self.s_G, ss, ss, HS_OFF)
        acc, bb, self.cs, ones = k.v(48), k.v(32), k.v(12), k.v(4)
        a16, a8 = k.v(2, align=1), k.v(2, align=1)
        k.e("v_add_u32 %s, %d, %s\nv_add_u32 %s, %d, %s", a16[0], HL, self.v_l16, a16[1], HL + 40960, self.v_l16)
        k.e("v_add_u32 %s, %d, %s\nv_add_u32 %s, %d, %s", a8[0], HL, self.v_l8, a8[1], HL + 40960, self.v_l8)
        for i in range(4):
            k.e("v_mov_b32 %s, 0x3f803f80", ones[i])
        self.poll_group(1, False)
        self.stamp("h seen")

        def piece(q, n):
            if n == 0:
                k.e("s_add_u32 m0, %s, %d", self.s_m0w, HL + 20480 * q)
            if n == 4:
                k.e("s_add_u32 %s, %s, 4096\ns_add_u32 m0, %s, %d", sh, sh, self.s_m0w, HL + 20480 * q + 4096)
            t = k.e("buffer_load_dwordx4 %s, %s, %s offen offset:%d sc1 lds", self.v_l16, self.WS, sh, 1024 * (n % 4))
            if n == 4:
                k.e("s_add_u32 %s, %s, 16384", sh, sh)
            return t
        tq = []
        for q in range(4):
            for n in range(5):
                en = k.bg_push(lambda q=q, n=n: piece(q, n), 75, front=1)
            tq.append(en)
        for p in range(8):
            k.bg_push(lambda p=p: k.e("buffer_load_dwordx2 %s, %s, %s, %s offen offset:%d sc1", sx[2 * p:2 * p + 2], ad, self.WS, ss, 512 * p),
                      40, [sx[2 * p:2 * p + 2]], front=1)
        k.bg_now(10)
        k.bg_restart(300)

        def reads(ks, tt):
            q, j = divmod(ks, 5)
            d = bb[16 * (ks & 1) + 4 * tt:16 * (ks & 1) + 4 * tt + 4]
            o = 20480 * (q & 1) + 2560 * tt
            if j == 2:
                k.e("ds_read_b64 %s, %s offset:%d\nds_read_b64 %s, %s offset:%d", d[0:2], a8[q >> 1], o + 2048, d[2:4], a8[q >> 1], o + 10240 + 2048)
            else:
                k.e("ds_read_b128 %s, %s offset:%d", d, a16[q >> 1], o + (0, 1024, 0, 10240, 11264)[j])

        def enter(q):
            k.wait_bg(tq[q])
            k.barrier(drain=False)

        enter(0)
        for tt in range(4):
            reads(0, tt)
        for ks in range(20):
            k.topup = self.o["top"] if ks < 18 else 0
            if ks % 5 == 4 and ks < 19:
                enter(ks // 5 + 1)
            for t in range(3):
                self.mfma(self.cs[4 * t:4 * t + 4], self.w1[3 * ks + t], ones, 0 if ks == 0 else None)
                k.tick()
            for tt in range(4):
                for t in range(3):
                    self.mfma(acc[12 * tt + 4 * t:12 * tt + 4 * t + 4], self.w1[3 * ks + t],
                              bb[16 * (ks & 1) + 4 * tt:16 * (ks & 1) + 4 * tt + 4], 0 if ks == 0 else None)
                    if t == 0 and ks < 19:
                        reads(ks + 1, tt)
                    elif ks < 18:
                        k.tick()
            refill(ks)
        k.release(ad, ss, sh, ones)
        self.stamp("ffn1 gemm")
        k.release(bb, a16, a8)
        for p in range(1, 8):
            k.e("v_pk_add_f32 %s, %s, %s", sx[0:2], sx[0:2], sx[2 * p:2 * p + 2])
        self.mean_rstd(sx[0], sx[1], sx[2])
        for src, o in ((sx[0], 0), (sx[2], 1)):
            r0, r1, r2, r3 = (sx[4 + 2 * i + o] for i in range(4))
            k.e("v_mov_b32 %s, %s\nv_mov_b32 %s, %s\nv_permlane32_swap_b32 %s, %s", r0, src, r2, src, r0, r2)
            k.e("v_mov_b32 %s, %s\nv_mov_b32 %s, %s\nv_permlane16_swap_b32 %s, %s\nv_permlane16_swap_b32 %s, %s", r1, r0, r3, r2, r0, r1, r2, r3)
        fb = k.v(24)
        for tt in range(4):
            mr = sx[4 + 2 * tt:6 + 2 * tt]
            for i in range(6):
                x = acc[12 * tt + 2 * i:12 * tt + 2 * i + 2]
                k.e("v_pk_fma_f32 %s, %s, %s, %s op_sel_hi:[1,0,1] neg_lo:[1,0,0] neg_hi:[1,0,0]", x, self.cs[2 * i:2 * i + 2], mr, x)
                k.e("v_pk_mul_f32 %s, %s, %s op_sel:[0,1] op_sel_hi:[1,1]", x, x, mr)
                k.e("v_cvt_pk_bf16_f32 %s, %s, %s\nv_pk_max_i16 %s, %s, 0", fb[6 * tt + i], x[0], x[1], fb[6 * tt + i], fb[6 * tt + i])
        self.dump("f", fb)
        k.e("s_lshl_b32 %s, %s, 3\ns_add_u32 %s, %s, %s\ns_mul_i32 %s, %s, 24576\ns_add_u32 %s, %s, 0x%x", st, self.s_G, st, st, self.s_c, st, st, st, st, F_OFF)
        s4, s8 = k.s(), k.s()
        k.e("s_lshl_b32 %s, %s, 10\ns_add_u32 %s, %s, %s", s4, self.s_wv, s4, s4, st)
        k.e("s_lshr_b32 %s, %s, 1\ns_lshl_b32 %s, %s, 10\ns_and_b32 %s, %s, 1\ns_lshl_b32 %s, %s, 3\ns_add_u32 %s, %s, %s\ns_add_u32 %s, %s, %s\ns_add_u32 %s, %s, 4096",
            s8, self.s_wv, s8, s8, s2, self.s_wv, s2, s2, s8, s8, s2, s8, s8, st, s8, s8)

        def fn(fl):
            for tt in range(4):
                k.e("s_add_u32 %s, %s, %d\ns_add_u32 %s, %s, %d", st, s4, 6144 * tt, s2, s8, 6144 * tt)
                k.e("buffer_store_dwordx4 %s, %s, %s, %s offen%s", fb[6 * tt:6 * tt + 4], self.v_l16, self.WS, st, fl)
                k.e("buffer_store_dwordx2 %s, %s, %s, %s offen%s", fb[6 * tt + 4:6 * tt + 6], self.v_l16, self.WS, s2, fl)
        self.shared_stores(fn)
        k.drain_vm()
        k.e("s_add_u32 %s, %s, 256", st, self.s_oflag)
        self.set_flag(st, True)
        k.release(acc, sx, fb, self.cs, s4, s8)
        self.stamp("f stored")

    def phase_d(self):
        k = self.k
        k.bg_now(self.o["pre_f"])
        sb = self.tile_bases(F_OFF, 49152, 6144, 24576)
        self.poll_group(2, True)
        self.stamp("f seen")

        def load_tt(b, i):
            def fn(ks):
                so = sb[2 * i + ks // 6]
                if ks % 6 == 4:
                    k.e("s_add_u32 %s, %s, 4096", so, so)
                return k.e("buffer_load_dwordx4 %s, %s, %s, %s offen offset:%d sc1", b[4 * ks:4 * ks + 4], self.v_l16, self.WS, so, 1024 * ((ks % 6) % 4))
            return [(lambda ks=ks: fn(ks), b[4 * ks:4 * ks + 4]) for ks in range(12)]
        acc = self.ksplit_gemm(self.w2, 12, load_tt, RED_D, 0)
        self.stamp("ffn2 gemm")
        self.add_packed(acc, self.hb)
        t = acc[0]
        st = self.s_tmp
        k.e("v_mul_u32_u24 %s, 1280, %s\nv_mad_u32_u24 %s, %s, 40, %s", t, self.v_s, t, self.v_g, t)
        k.e("s_lshl_b32 %s, %s, 2\ns_add_u32 %s, %s, %s\ns_mul_i32 %s, %s, 20480\ns_mul_i32 %s, %s, 160\ns_add_u32 %s, %s, %s",
            st, self.s_G, st, st, self.s_wv, st, st, self.s_tmp2, self.s_c, st, st, self.s_tmp2)
        hb = self.hb
        k.e("buffer_store_dwordx4 %s, %s, %s, %s offen", hb[0:4], t, self.OUT, st)
        k.e("buffer_store_dwordx4 %s, %s, %s, %s offen offset:16", hb[4:8], t, self.OUT, st)
        k.e("buffer_store_dwordx2 %s, %s, %s, %s offen offset:32", hb[8:10], t, self.OUT, st)
        k.release(acc, sb)

    def build(self):
        k = self.k
        self.prologue()
        self.phase_a()
        self.attn_out()
        extra = [k.v(4) for _ in range(21)]
        self.w1 = [k.a(4, at=100 + 4 * i) for i in range(39)] + extra
        s_w1, s_w2 = self.stream_base(W1_OFF, 60), self.stream_base(W2_OFF, 60)
        self.queue_frags(s_w1, self.w1, 0)
        self.phase_b()
        self.w2 = self.wo + self.w1[:35]
        self.queue_frags(s_w2, self.w2[:25], 0)

        def refill(ks):
            lo, hi = 3 * ks, min(3 * ks + 3, 35)
            if lo < hi:
                self.queue_frags(s_w2, self.w2[25 + lo:25 + hi], 25 + lo)
        self.phase_c(refill)
        k.release(*extra)
        self.phase_d()
        if self.stamps:
            k.drain_vm()
            self.stamp("end")
            st = self.s_tmp
            k.e("s_lshl_b32 %s, s2, 2\ns_add_u32 %s, %s, %s\ns_lshl_b32 %s, %s, 8\ns_add_u32 %s, %s, 0x%x", st, st, st, self.s_wv, st, st, st, st, STAMP_OFF)
            k.e("buffer_store_dword %s, %s, %s, %s offen", self.v_stamp, self.v_l4, self.WS, st)
        k.put("L_end")
        k.e("s_endpgm")
        return HEAD + k.text() + TAIL


if __name__ == "__main__":
    out = sys.argv[1] if len(sys.argv) > 1 else "cdna_kernels/%s.s" % NAME
    g = Gen()
    open(out, "w").write(g.build())
    print("written", out, "instructions", len(g.k.ins), "hi", g.k.hi)
```

```python
import sys, os, gen
os.makedirs("var", exist_ok=True)
for a in sys.argv[1:]:
    name, _, o = a.partition(":")
    opts = {k: int(v) for k, v in (kv.split("=") for kv in o.split(",") if kv)}
    open("var/%s.s" % name, "w").write(gen.Gen(**opts).build())
    print("var/%s.s" % name, opts)
```

```python
import re

_REG = re.compile(r"^(-?)(?:abs\()?\|?([vas])(?:(\d+)|\[(\d+):(\d+)\])\)?\|?$")
TRANS = ("v_exp_f32", "v_log_f32", "v_rcp_f32", "v_rsq_f32", "v_sqrt_f32")


def regs_of(tok):
    tok = tok.strip()
    if tok in ("vcc", "exec", "vcc_lo", "vcc_hi"):
        return {(tok[:4].rstrip("_"), 0)}
    if tok == "m0":
        return {("m0", 0)}
    m = _REG.match(tok)
    if not m:
        return set()
    kind = m.group(2)
    if m.group(3) is not None:
        return {(kind, int(m.group(3)))}
    return {(kind, i) for i in range(int(m.group(4)), int(m.group(5)) + 1)}


class R:
    def __init__(self, kind, base, n):
        self.kind, self.base, self.n = kind, base, n

    def __getitem__(self, i):
        if isinstance(i, slice):
            a = i.start or 0
            b = self.n if i.stop is None else i.stop
            assert 0 <= a < b <= self.n, (a, b, self.n)
            return R(self.kind, self.base + a, b - a)
        assert 0 <= i < self.n, (i, self.n)
        return R(self.kind, self.base + i, 1)

    def __str__(self):
        if self.n == 1:
            return "%s%d" % (self.kind, self.base)
        return "%s[%d:%d]" % (self.kind, self.base, self.base + self.n - 1)

    __repr__ = __str__


class Ins:
    __slots__ = ("text", "op", "cls", "defs", "uses", "srcc", "store_data", "states")

    def __init__(self, text):
        self.text = text
        self.defs, self.uses, self.srcc, self.store_data = set(), set(), set(), set()
        self.states = 1
        t = text.split(";")[0].strip()
        if not t or t.endswith(":") or t.startswith("."):
            self.op, self.cls, self.states = "", "label", 0
            return
        parts = t.split(None, 1)
        op = self.op = parts[0]
        rest = parts[1] if len(parts) > 1 else ""
        toks = [x.strip() for x in re.split(r",(?![^\[]*\])", rest)] if rest else []
        if toks:
            last = toks[-1].split()
            mods = last[1:]
            toks[-1] = last[0] if last else ""
        else:
            mods = []
        rs = [regs_of(x) for x in toks]
        allr = set().union(*rs) if rs else set()
        if op.startswith("v_mfma"):
            self.cls = "mfma"
            self.defs = rs[0]
            self.uses = rs[1] | rs[2] | rs[3]
            self.srcc = rs[3]
        elif op.startswith("v_"):
            self.cls = "valu"
            if op.startswith("v_permlane"):
                self.defs = self.uses = allr
            elif op.startswith(("v_add_co", "v_addc_co", "v_sub_co")):
                self.defs = rs[0] | rs[1]
                self.uses = set().union(*rs[2:])
            else:
                self.defs = rs[0]
                self.uses = set().union(*rs[1:]) if len(rs) > 1 else set()
                if op.startswith(("v_fmac", "v_dot2c", "v_writelane")):
                    self.uses = self.uses | rs[0]
        elif op.startswith("ds_"):
            self.cls = "ds"
            if op.startswith(("ds_read", "ds_bpermute", "ds_permute", "ds_swizzle")):
                self.defs = rs[0]
                self.uses = set().union(*rs[1:])
            else:
                self.uses = allr
        elif op.startswith(("buffer_", "global_")):
            self.cls = "vmem"
            if "lds" in mods:
                self.uses = allr | {("m0", 0)}
            elif "_load" in op:
                self.defs = rs[0]
                self.uses = set().union(*rs[1:])
            else:
                self.uses = allr
                if op.endswith(("x3", "x4")):
                    self.store_data = rs[0]
        elif op == "s_nop":
            self.cls = "nop"
            self.states = int(toks[0], 0) + 1
        elif op.startswith("s_"):
            self.cls = "salu"
            nodef = ("s_cmp", "s_cbranch", "s_branch", "s_waitcnt", "s_barrier", "s_endpgm", "s_sleep",
                     "s_setprio", "s_bitcmp", "s_setpc")
            if op.startswith(nodef):
                self.uses = allr
            else:
                self.defs = rs[0] if rs else set()
                self.uses = set().union(*rs[1:]) if len(rs) > 1 else set()
                if "saveexec" in op:
                    self.defs = self.defs | {("exec", 0)}
        else:
            raise ValueError(text)


def is_vec(r):
    return r[0] in ("v", "a")


def need(p, c):
    n = 0
    if p.cls == "valu":
        vd = {r for r in p.defs if is_vec(r)}
        sd = p.defs - vd
        if vd:
            if c.cls == "mfma" and vd & c.uses:
                n = max(n, 2)
            if c.cls == "valu" and vd & c.uses:
                if c.op.startswith("v_permlane") or "dpp" in c.text:
                    n = max(n, 2)
                if c.op.startswith(("v_readlane", "v_readfirstlane")):
                    n = max(n, 1)
                if p.op.startswith(TRANS) and not c.op.startswith(TRANS):
                    n = max(n, 1)
            if p.op.startswith("v_dot2") and vd & (c.uses | c.defs) and c.op != p.op:
                n = max(n, 3)
            if p.op.startswith(TRANS) and c.cls in ("vmem", "ds", "mfma") and vd & c.uses:
                n = max(n, 2)
        if sd:
            if c.cls in ("valu", "mfma") and sd & c.uses:
                n = max(n, 4 if c.op.startswith(("v_readlane", "v_writelane")) else 2)
            if c.cls == "vmem" and sd & c.uses:
                n = max(n, 5)
            if c.cls == "salu" and sd & c.uses:
                n = max(n, 1)
    elif p.cls == "mfma":
        big = "32x32" in p.op
        if c.cls == "mfma":
            if p.defs & (c.uses - c.srcc):
                n = max(n, 12 if big else 8)
            if p.defs & c.srcc and p.defs != c.srcc:
                n = max(n, 10 if big else 6)
            if p.defs & c.defs and p.defs != c.srcc:
                n = max(n, 12 if big else 8)
        elif c.cls in ("valu", "vmem", "ds"):
            if p.defs & (c.uses | c.defs):
                n = max(n, 12 if big else 8)
            if c.cls == "valu" and p.srcc & c.defs:
                n = max(n, 7 if big else 3)
    elif p.cls == "vmem":
        if p.store_data and p.store_data & c.defs:
            n = max(n, 2)
    elif p.cls == "salu":
        if ("m0", 0) in p.defs and ("m0", 0) in c.uses:
            n = max(n, 1)
    return n


def pad_hazards(ins):
    out = []
    branches = {}

    def shortfall(c, idx, dist):
        short = 0
        while idx >= 0 and dist < 20:
            p = out[idx]
            if p.cls == "label":
                for b in branches.get(p.text.strip()[:-1], ()):
                    short = max(short, shortfall(c, b, dist))
                if idx > 0 and out[idx - 1].op in ("s_branch", "s_endpgm"):
                    return short
            elif p.cls != "nop":
                short = max(short, need(p, c) - dist)
            dist += p.states
            idx -= 1
        return short

    for c in ins:
        if c.cls not in ("label", "nop"):
            short = shortfall(c, len(out) - 1, 0)
            while short > 0:
                k = min(short, 16)
                out.append(Ins("s_nop %d" % (k - 1)))
                short -= k
        out.append(c)
        if c.op.startswith(("s_branch", "s_cbranch")):
            branches.setdefault(c.text.split()[1], []).append(len(out) - 1)
    return out


class Queue:
    def __init__(self, name, cap):
        self.name, self.cap = name, cap
        self.q = []
        self.next = 0

    def push(self, dests):
        self.q.append([self.next, True, set(dests)])
        self.next += 1
        return self.next - 1

    def count_after(self, t):
        return sum(1 for e in self.q if e[0] > t and e[1])

    def pending(self, t):
        return any(e[0] == t for e in self.q)

    def retire(self, t):
        self.q = [e for e in self.q if e[0] > t]


class Bg:
    def __init__(self, fn, period, dests):
        self.fn, self.period, self.ticket, self.front = fn, period, None, False
        self.dests = set()
        for d in dests:
            self.dests |= regs_of(str(d))


class K:
    def __init__(self):
        self.ins = []
        self.vm = Queue("vmcnt", 63)
        self.ds = Queue("lgkmcnt", 15)
        self.free = {"v": [True] * 256, "a": [True] * 256, "s": [True] * 102}
        self.nlabel = 0
        self.cond = []
        self.hi = {"v": 0, "a": 0, "s": 0}
        self.clock = 0
        self.last_mfma = -16
        self.bg = []
        self.bg_next = 0
        self.in_bg = False
        self.topup = 0
        self.sp_left, self.sp_period = 0, 0

    def alloc(self, kind, n, align=None, at=None):
        align = align or (1 if n == 1 else 2)
        f = self.free[kind]
        if at is not None:
            assert all(f[at:at + n]), (kind, at, n)
            b = at
        else:
            for b in range(0, len(f) - n + 1, align):
                if all(f[b:b + n]):
                    break
            else:
                raise RuntimeError("out of %s registers (need %d)" % (kind, n))
        for i in range(b, b + n):
            f[i] = False
        self.hi[kind] = max(self.hi[kind], b + n)
        return R(kind, b, n)

    def v(self, n=1, align=None, at=None):
        return self.alloc("v", n, align, at)

    def a(self, n=1, align=None, at=None):
        return self.alloc("a", n, align, at)

    def s(self, n=1, align=None, at=None):
        return self.alloc("s", n, align, at)

    def release(self, *rs):
        for r in rs:
            for i in range(r.base, r.base + r.n):
                assert not self.free[r.kind][i], r
                self.free[r.kind][i] = True

    def nfree(self, kind):
        return sum(self.free[kind])

    def _wait(self, q, t):
        if not q.pending(t):
            return
        if q is self.vm and not self.in_bg:
            while self.bg and q.count_after(t) < self.topup:
                self._bg_emit()
        n = min(q.count_after(t), q.cap)
        self.ins.append(Ins("s_waitcnt %s(%d)" % (q.name, n)))
        q.retire(t)

    def wait_vm(self, t):
        self._wait(self.vm, t)

    def wait_ds(self, t):
        self._wait(self.ds, t)

    def drain_vm(self):
        self.ins.append(Ins("s_waitcnt vmcnt(0)"))
        self.vm.q = []

    def drain_ds(self):
        self.ins.append(Ins("s_waitcnt lgkmcnt(0)"))
        self.ds.q = []

    def barrier(self, drain=True):
        if drain and self.ds.q:
            self.drain_ds()
        self.ins.append(Ins("s_barrier"))

    def e(self, text, *args):
        if args:
            text = text % args
        ticket = None
        for line in text.split("\n"):
            line = line.strip()
            if not line:
                continue
            i = Ins(line)
            touched = i.uses | i.defs
            if not self.in_bg:
                hit = [n for n, en in enumerate(self.bg) if en.dests & touched]
                if hit:
                    self.bg_flush(self.bg[max(hit)])
            for q in (self.vm, self.ds):
                hit = [en[0] for en in q.q if en[2] & touched]
                if hit:
                    self._wait(q, max(hit))
            self.ins.append(i)
            self._advance(i)
            if i.cls == "vmem":
                ticket = self.vm.push(i.defs)
            elif i.cls == "ds":
                ticket = self.ds.push(i.defs)
        return ticket

    def _advance(self, i):
        if i.cls == "mfma":
            start = max(self.clock, self.last_mfma + 16)
            self.last_mfma = start
            self.clock = start + 8
        elif i.cls != "label":
            self.clock += 8 if i.op.startswith(TRANS + ("v_permlane",)) else 4 * i.states

    def bg_push(self, fn, period, dests=(), front=0):
        en = Bg(fn, period, dests)
        if front:
            pos = sum(1 for x in self.bg if x.front)
            en.front = True
            self.bg.insert(pos, en)
        else:
            self.bg.append(en)
        return en

    def _bg_emit(self):
        en = self.bg.pop(0)
        self.in_bg = True
        en.ticket = en.fn()
        self.in_bg = False
        self.sp_left -= 1

    def spread(self, n, cycles, delay=0):
        self.sp_left, self.sp_period = n, cycles / max(n, 1)
        self.bg_next = self.clock + delay

    def tick(self):
        if self.bg and self.sp_left > 0 and self.clock >= self.bg_next:
            nxt = self.bg_next + self.sp_period
            self._bg_emit()
            self.bg_next = nxt

    def bg_now(self, n):
        for _ in range(min(n, len(self.bg))):
            self._bg_emit()

    def bg_flush(self, en):
        while en.ticket is None:
            self._bg_emit()

    def wait_bg(self, en):
        self.bg_flush(en)
        self.wait_vm(en.ticket)

    def label(self, stem="L"):
        self.nlabel += 1
        return "%s_%d" % (stem, self.nlabel)

    def put(self, label):
        self.ins.append(Ins(label + ":"))

    def cond_begin(self):
        self.cond.append(tuple((q.next, [list(e) for e in q.q]) for q in (self.vm, self.ds)))

    def cond_end(self):
        saved = self.cond.pop()
        for q, (mark, before) in zip((self.vm, self.ds), saved):
            inner = [e for e in q.q if e[0] >= mark]
            for e in inner:
                e[1] = False
            q.q = before + inner

    def either(self, cond_scc1, other):
        la, lb = self.label("L_alt"), self.label("L_join")
        snap = tuple((q.next, [list(e) for e in q.q]) for q in (self.vm, self.ds))
        self.e("s_cbranch_scc0 %s", la)
        r = cond_scc1()
        after = tuple((q.next, [e[0] for e in q.q]) for q in (self.vm, self.ds))
        self.e("s_branch %s", lb)
        self.put(la)
        for q, (nx, en) in zip((self.vm, self.ds), snap):
            q.next, q.q = nx, en
        other()
        assert after == tuple((q.next, [e[0] for e in q.q]) for q in (self.vm, self.ds))
        self.put(lb)
        return r

    def text(self):
        out = []
        for i in pad_hazards(self.ins):
            out.append(i.text if i.cls == "label" else "    " + i.text)
        return "\n".join(out)
```

```python
import sys
from emit import K, R

NAME = "sequential_preLN__linear_kernel_hedgehog__dense_activation_relu__prompt"

WO_OFF, W1_OFF, W2_OFF, WQ_OFF = 0x0, 0x100000, 0x300000, 0x500000
KVP_OFF, KVF_OFF, HS_OFF = 0x600000, 0xC00000, 0xC20000
KVH = 1792
FLAG_OFF = 0xC40000
READY_OFF, EPOCH_OFF = 0xC44000, 0xC48000
O_OFF, H_OFF, F_OFF = 0xD00000, 0x1000000, 0x1300000
STAMP_OFF, DUMP_OFF = 0x1A00000, 0x2000000
WS_BYTES = 0x1900000
FAR = 0x40000000

SLOT = [81920, 102400, 0, 20480, 122880, 143360]
XS = 0
RLS = 122880
TR, TRP = 40960, 544
ZERO, WPH = 75776, 77824
KVS = 20480
KVL = TR
RED_B, RED_D = 81920, 0
HL = 81920
LDS_BYTES = 163840
MAT = [1280, 2560]
SPIN = 1 << 18

HEAD = """; Fused pre-LN hedgehog linear attention + ReLU FFN, one persistent launch.
; 256 workgroups: 32 row blocks of 64 tokens x 8 column slices (4 heads / 80 / 192 columns).
; @launch grid=(256,1,1) block=(256,1,1) lds=%d
.amdgcn_target "amdgcn-amd-amdhsa--gfx950"
.text
.globl %s_kernel
.p2align 8
.type %s_kernel,@function
%s_kernel:
""" % (LDS_BYTES, NAME, NAME, NAME)

TAIL = """
.section .rodata,"a"
.p2align 6
.amdhsa_kernel %s_kernel
  .amdhsa_next_free_vgpr 512
  .amdhsa_next_free_sgpr 102
  .amdhsa_accum_offset 256
  .amdhsa_group_segment_fixed_size 0
  .amdhsa_kernarg_size 80
  .amdhsa_user_sgpr_count 2
  .amdhsa_user_sgpr_kernarg_segment_ptr 1
  .amdhsa_system_sgpr_workgroup_id_x 1
.end_amdhsa_kernel
""" % NAME


class Gen:
    def __init__(self, stamps=False, dumps=(), force_slow=False, **opt):
        self.k = K()
        self.o = dict(codepf=1, wpf=1, touch=0, rot=1, xnt=1, rlnt=1, q0=8, s1_at=12, s1_use=13, fin_at=14,
                      pre_o=5, pre_h=5, pre_f=5, fine=0, top=10, norl=0, noclear=0, look=2,
                      n_q=16, n_phq=18, n_att=6, n_b=16, n_c=40, stop_c=18, tch_at=10, probe=0, hyb=7, tnt=0,
                      wpf_at=1, k_delay=500, init_at=0, n_v=0, k_early=0, dup=0)
        assert set(opt) <= set(self.o), opt
        self.o.update(opt)
        self.stamps, self.dumps, self.force_slow = stamps, set(dumps), force_slow
        self.stamp_names = []
        self.log = []
        self.dump_info = {}

    def mfma(self, d, a, b, c=None):
        self.k.e("v_mfma_f32_16x16x32_bf16 %s, %s, %s, %s", d, a, b, d if c is None else c)

    def srd(self, dst, ptr, nbytes):
        self.k.e("s_mov_b32 %s, %s\ns_mov_b32 %s, %s\ns_mov_b32 %s, 0x%x\ns_mov_b32 %s, 0x20000",
                 dst[0], ptr[0], dst[1], ptr[1], dst[2], nbytes, dst[3])

    def stamp(self, name):
        self.log.append((name, self.k.clock, len(self.k.bg), self.k.vm.next))
        if not self.stamps:
            return
        k = self.k
        k.e("s_memrealtime %s", self.s_t)
        k.drain_ds()
        k.e("v_writelane_b32 %s, %s, %d", self.v_stamp, self.s_t[0], len(self.stamp_names))
        self.stamp_names.append(name)

    def dump(self, name, regs):
        if name not in self.dumps:
            return
        k = self.k
        idx = len(self.dump_info)
        self.dump_info[name] = (idx, regs.n)
        st, t = self.s_tmp, k.v()
        k.e("s_lshl_b32 %s, s2, 2\ns_add_u32 %s, %s, %s\ns_mul_i32 %s, %s, %d\ns_add_u32 %s, %s, 0x%x",
            st, st, st, self.s_wv, st, st, 128 * 256, st, st, DUMP_OFF + idx * 0x2000000)
        k.e("v_lshlrev_b32 %s, 2, %s", t, self.v_lane)
        for i in range(regs.n):
            k.e("buffer_store_dword %s, %s, %s, %s offen", regs[i], t, self.WS, st)
            k.e("s_add_u32 %s, %s, 256", st, st)
        k.drain_vm()
        k.release(t)

    def set_exec(self, mask):
        k = self.k
        if -1 <= mask <= 64:
            k.e("s_mov_b64 exec, %d", mask)
        else:
            k.e("s_mov_b32 exec_lo, 0x%x\ns_mov_b32 exec_hi, 0x%x", mask & 0xFFFFFFFF, mask >> 32)

    def wave_is(self, n):
        k = self.k
        lab = k.label("L_w")
        k.e("s_cmp_lg_u32 %s, %d\ns_cbranch_scc1 %s", self.s_wv, n, lab)
        k.cond_begin()
        return lab

    def close(self, lab):
        self.k.cond_end()
        self.k.put(lab)

    def shared_stores(self, fn, data=0):
        k = self.k
        if data & self.o["hyb"]:
            return fn(" sc1")
        k.e("s_cmp_lg_u32 %s, 0", self.s_fast)
        return k.either(lambda: fn(""), lambda: fn(" sc1"))

    def poll(self, voff, soff, nlanes):
        k = self.k
        lab, out = k.label("L_poll"), k.label("L_pollout")
        t = k.v()
        self.set_exec((1 << nlanes) - 1)
        k.e("s_mov_b32 %s, 0", self.s_spin)
        k.put(lab)
        k.e("buffer_load_dword %s, %s, %s, %s offen sc1", t, voff, self.WS, soff)
        k.e("s_add_u32 %s, %s, 1\ns_cmp_gt_u32 %s, %d\ns_cbranch_scc1 %s", self.s_spin, self.s_spin, self.s_spin, SPIN, out)
        k.drain_vm()
        k.e("v_cmp_ne_u32 vcc, %s, %s\ns_cbranch_vccnz %s", self.s_tag[0], t, lab)
        k.put(out)
        k.drain_vm()
        self.set_exec(-1)
        k.release(t)

    def set_flag(self, soff, local):
        k = self.k
        self.set_exec(1)
        fn = lambda fl: k.e("buffer_store_dword %s, %s, %s, %s offen%s", self.v_tag, self.v_zero, self.WS, soff, fl)
        if local:
            self.shared_stores(fn)
        else:
            fn(" sc1")
        self.set_exec(-1)

    def reduce2(self, a, b):
        k = self.k
        t = k.v()
        k.e("v_permlane32_swap_b32 %s, %s\nv_add_f32 %s, %s, %s\nv_mov_b32 %s, %s", a, b, a, a, b, t, a)
        k.e("v_permlane16_swap_b32 %s, %s\nv_add_f32 %s, %s, %s\nv_mov_b32 %s, %s", a, t, a, a, t, b, a)
        k.e("v_permlane32_swap_b32 %s, %s", a, b)
        k.release(t)

    def prologue(self):
        k = self.k
        k.s(3, at=0)
        self.X, self.WQKV, self.WS, self.DBG = (k.s(4, at=4 + 4 * i) for i in range(4))
        self.OUT, self.WPHI, self.RL = (k.s(4, at=20 + 4 * i) for i in range(3))
        self.ptr = k.s(20, at=32)
        for n in ("wv", "c", "G", "fast", "spin", "tmp", "tmp2", "m0w", "wcol", "bg", "cw", "gcw"):
            setattr(self, "s_" + n, k.s())
        self.s_t = k.s(2)
        self.s_L = k.s(2)
        self.s_tag = k.s(2)
        k.v(at=0)
        k.e("s_cmp_ge_u32 s2, 256\ns_cbranch_scc1 L_end")
        k.e("s_load_dwordx16 %s, s[0:1], 0\ns_load_dwordx4 %s, s[0:1], 64", self.ptr[0:16], self.ptr[16:20])
        for n in ("lane", "g", "s", "r", "cc", "zero", "tag", "l16", "l8", "l4", "l128", "junk"):
            setattr(self, "v_" + n, k.v())
        if self.stamps:
            self.v_stamp = k.v()
            k.e("v_mov_b32 %s, 0", self.v_stamp)
        st, s2 = self.s_tmp, self.s_tmp2
        k.e("v_lshrrev_b32 %s, 6, v0\nv_and_b32 %s, 63, v0\nv_readfirstlane_b32 %s, %s",
            self.v_g, self.v_lane, self.s_wv, self.v_g)
        k.e("s_bfe_u32 %s, s2, 0x30003\ns_and_b32 %s, s2, 7\ns_lshl_b32 %s, %s, 2\ns_lshr_b32 %s, s2, 6\ns_add_u32 %s, %s, %s",
            self.s_c, self.s_G, self.s_G, self.s_G, st, self.s_G, self.s_G, st)
        k.e("v_lshlrev_b32 %s, 7, %s", self.v_l128, self.v_lane)
        self.code_prefetch()

        xd = k.v(5, align=1)
        t, u = k.v(), k.v()
        rot = k.s()
        k.e("s_and_b32 %s, %s, %d\ns_lshl_b32 %s, %s, 7", rot, self.s_c, self.o["rot"], st, rot)
        for n in range(5):
            d = xd[n]
            k.e("v_add_u32 %s, %d, %s\nv_mul_u32_u24 %s, 205, %s\nv_lshrrev_b32 %s, 14, %s", t, 64 * n, self.v_lane, u, t, u, u)
            k.e("v_mul_u32_u24 %s, 80, %s\nv_sub_u32 %s, %s, %s\nv_xor_b32 %s, %s, %s", d, u, t, t, d, t, t, u)
            k.e("v_mul_u32_u24 %s, 1280, %s\nv_lshl_add_u32 %s, %s, 4, %s\nv_xor_b32 %s, %s, %s", u, u, d, t, u, d, st, d)
        sx, sm = k.s(2, align=1), k.s(2, align=1)
        k.e("s_mul_i32 %s, %s, 10240\ns_mul_i32 %s, %s, 20480\ns_add_u32 %s, %s, %s\ns_sub_u32 %s, %s, %s\ns_add_u32 %s, %s, 10240",
            rot, rot, st, self.s_wv, sm[0], st, rot, sm[1], st, rot, sm[1], sm[1])
        k.e("s_mul_i32 %s, %s, 81920\ns_add_u32 %s, %s, %s\ns_add_u32 %s, %s, %s", st, self.s_G, sx[0], sm[0], st, sx[1], sm[1], st)
        k.release(rot)

        k.e("s_waitcnt lgkmcnt(0)")
        p = self.ptr
        self.srd(self.X, p[0:2], 2621440)
        self.srd(self.WQKV, p[2:4], 2457600)
        self.stamp("start")
        if self.o["probe"]:
            self.probe()

        def x_dma(m):
            if m & 1:
                k.e("s_add_u32 %s, %s, 5120", sx[m >> 1], sx[m >> 1])
            for n in range(5):
                src = xd[n]
                if m:
                    k.e("v_xor_b32 %s, %d, %s", t, 64 * m, src)
                    src = t
                k.e("s_add_u32 m0, %s, %d", sm[m >> 1], XS + (5 * (m & 1) + n) * 1024)
                self.t_x = k.e("buffer_load_dwordx4 %s, %s, %s offen%s lds", src, self.X, sx[m >> 1], " nt" if self.o["xnt"] else "")
        x_dma(0)
        x_dma(1)
        k.e("s_add_u32 %s, %s, 0x%x\ns_addc_u32 %s, %s, 0\ns_load_dword %s, %s, 0", self.s_t[0], p[18], EPOCH_OFF, self.s_t[1], p[19], self.s_tag[0], self.s_t)

        self.srd(self.WPHI, p[4:6], 25600)
        self.srd(self.OUT, p[14:16], 2621440)
        self.srd(self.WS, p[18:20], 0x10000000 if (self.stamps or self.dumps) else WS_BYTES)
        k.e("v_lshrrev_b32 %s, 4, %s\nv_and_b32 %s, 15, %s\nv_bfe_u32 %s, %s, 2, 2\nv_and_b32 %s, 3, %s",
            self.v_g, self.v_lane, self.v_s, self.v_lane, self.v_r, self.v_lane, self.v_cc, self.v_lane)
        k.e("v_mov_b32 %s, 0", self.v_zero)
        k.e("v_lshlrev_b32 %s, 4, %s\nv_lshlrev_b32 %s, 3, %s\nv_lshlrev_b32 %s, 2, %s",
            self.v_l16, self.v_lane, self.v_l8, self.v_lane, self.v_l4, self.v_lane)
        k.e("s_mov_b32 %s, 0x3fb8aa3b\ns_mov_b32 %s, 0x3fb8aa3b", self.s_L[0], self.s_L[1])
        k.e("s_mul_i32 %s, %s, 5120", self.s_m0w, self.s_wv)
        k.e("s_lshl_b32 %s, %s, 2\ns_add_u32 %s, %s, %s\ns_lshl_b32 %s, %s, 5\ns_add_u32 %s, %s, %s",
            self.s_cw, self.s_c, self.s_cw, self.s_cw, self.s_wv, self.s_gcw, self.s_G, self.s_gcw, self.s_gcw, self.s_cw)
        k.e("s_mul_i32 %s, %s, 122880\ns_mul_i32 %s, %s, 160\ns_add_u32 %s, %s, %s",
            self.s_wcol, self.s_wv, st, self.s_c, self.s_wcol, self.s_wcol, st)
        self.v_wd = k.v(5, align=1)
        w = k.v()
        for n in range(5):
            d = self.v_wd[n]
            k.e("v_add_u32 %s, %d, %s\nv_mul_u32_u24 %s, 6554, %s\nv_lshrrev_b32 %s, 16, %s", t, 64 * n, self.v_lane, u, t, u, u)
            k.e("v_mul_u32_u24 %s, 10, %s\nv_sub_u32 %s, %s, %s", d, u, t, t, d)
            k.e("v_and_b32 %s, 0x13, %s\nv_bfe_u32 %s, %s, 2, 1\nv_lshl_or_b32 %s, %s, 3, %s", d, u, w, u, d, w, d)
            k.e("v_bfe_u32 %s, %s, 3, 1\nv_lshl_or_b32 %s, %s, 2, %s", w, u, d, w, d)
            k.e("v_mul_u32_u24 %s, 3840, %s\nv_lshl_add_u32 %s, %s, 4, %s", d, d, d, t, d)
        k.release(w)
        self.relayout_setup()
        self.kv_addresses()
        x_dma(2)
        x_dma(3)
        k.release(t, u, xd, sx, sm)
        self.stamp("x issued")
        if self.o["wpf_at"] == 0:
            self.weight_prefetch()
        self.relayout_load()
        k.bg_flush(self.b_rl)
        if self.o["wpf_at"] == 1:
            self.weight_prefetch()

        self.v_wphi = k.v(4)
        self.v_wpa = k.v()
        k.e("v_lshlrev_b32 %s, 4, v0\ns_mul_i32 %s, %s, 3200\nv_add_u32 %s, %s, %s", self.v_wpa, st, self.s_c, self.v_wpa, st, self.v_wpa)
        k.e("v_cmp_gt_u32 vcc, 200, v0\nv_mov_b32 %s, 0x%x\nv_cndmask_b32 %s, %s, %s, vcc", self.v_wphi[0], FAR, self.v_wpa, self.v_wphi[0], self.v_wpa)
        k.e("buffer_load_dwordx4 %s, %s, %s, 0 offen", self.v_wphi, self.v_wpa, self.WPHI)

    def probe(self):
        k = self.k
        which = self.o["probe"]
        ptr, off = {1: (18, 0xD00000), 2: (18, 0xFF00000), 3: (0, 0x200000), 4: (12, 0x100000), 5: (14, 0x100000), 6: (18, 0x8000000), 7: (18, 0xD00000),
                    8: (2, 0x100000), 9: (18, 0x2800000), 10: (0, 0x100000), 11: (10, 0x100000), 12: (18, 0x1800000), 13: (18, 0x100000)}[which]
        lab, loop = k.label("L_pr"), k.label("L_pr")
        d, t2 = self.DBG, k.s(2)
        quiet = k.label("L_pr")
        k.e("s_cmp_eq_u32 s2, 100\ns_cbranch_scc1 %s\ns_sleep 127\ns_sleep 127\ns_branch %s", quiet, lab)
        k.put(quiet)
        k.cond_begin()
        self.srd(d, self.ptr[ptr:ptr + 2], 0x10000000 if ptr == 18 else 0x1D0000 + (0x80000 if ptr not in (10, 12) else 0))
        k.drain_vm()
        k.e("v_mov_b32 %s, 0x%x\ns_memtime %s\ns_waitcnt lgkmcnt(0)", self.v_zero, off, self.s_t)
        for i in range(0 if which == 7 else 24):
            k.e("buffer_load_dword %s, %s, %s, 0 offen", self.v_junk, self.v_zero, d)
            k.drain_vm()
            k.e("v_add_u32 %s, %d, %s", self.v_zero, 0x8480, self.v_zero)
        k.e("s_memtime %s\ns_waitcnt lgkmcnt(0)\ns_sub_u32 %s, %s, %s\ns_mul_i32 %s, %s, %d", t2, self.s_t[0], t2[0], self.s_t[0], self.s_t[0], self.s_t[0], 1)
        k.e("s_mov_b32 %s, %s", self.s_t[1], t2[0])
        k.put(loop)
        k.e("s_memtime %s\ns_waitcnt lgkmcnt(0)\ns_sub_u32 %s, %s, %s\ns_cmp_lt_u32 %s, %s\ns_cbranch_scc1 %s", t2, t2[0], t2[0], self.s_t[1], t2[0], self.s_t[0], loop)
        k.cond_end()
        k.put(lab)
        k.release(t2)

    def kv_addresses(self):
        k = self.k
        st, s2 = self.s_tmp, self.s_tmp2
        self.s_kvp, self.s_kvrow, self.s_kvf = k.s(), k.s(), k.s()
        self.v_hi41, self.v_lo5 = k.v(), k.v()
        t = k.v()
        k.e("v_mov_b32 %s, 0x%x\nv_cmp_gt_u32 vcc, 41, %s\nv_cndmask_b32 %s, %s, %s, vcc", t, FAR, self.v_lane, self.v_hi41, t, self.v_l16)
        k.e("v_cmp_gt_u32 vcc, 5, %s\nv_cndmask_b32 %s, %s, %s, vcc", self.v_lane, self.v_lo5, t, self.v_l16)
        k.release(t)
        k.e("s_lshl_b32 %s, %s, 5\ns_add_u32 %s, %s, %s\ns_lshl_b32 %s, %s, 2\ns_add_u32 %s, %s, %s\ns_mul_i32 %s, %s, %d\ns_add_u32 %s, %s, 0x%x",
            st, self.s_c, st, st, self.s_G, st, st, st, st, self.s_wv, st, st, KVH, self.s_kvp, st, KVP_OFF)
        k.e("s_and_b32 %s, %s, 7\ns_mul_i32 %s, %s, 3\ns_add_u32 %s, %s, %s\ns_mul_i32 %s, %s, 80", st, self.s_G, st, st, st, st, self.s_wv, s2, st)
        k.e("s_cmp_ge_u32 %s, 21\ns_cselect_b32 %s, 0x%x, %s\ns_cmp_eq_u32 %s, 3\ns_cselect_b32 %s, 0x%x, %s", st, s2, FAR, s2, self.s_wv, s2, FAR, s2)
        k.e("s_lshr_b32 %s, %s, 3\ns_mul_i32 %s, %s, %d\ns_add_u32 %s, %s, %s", st, self.s_G, st, st, KVH, self.s_kvrow, st, s2)
        k.e("s_mul_i32 %s, %s, %d\ns_add_u32 %s, %s, %s\ns_add_u32 %s, %s, 0x%x", st, self.s_c, 4 * KVH, st, st, self.s_kvrow, self.s_kvf, st, KVF_OFF)

    def clears(self):
        k = self.k
        st = self.s_tmp
        self.s_oflag = k.s()
        k.e("s_mul_i32 %s, %s, 384\ns_lshl_b32 %s, %s, 2\ns_add_u32 %s, %s, %s\ns_add_u32 %s, %s, 0x%x",
            st, self.s_G, self.s_oflag, self.s_cw, st, st, self.s_oflag, self.s_oflag, st, FLAG_OFF)
        self.set_exec(7)
        k.e("buffer_load_dword %s, %s, %s, %s offen sc1", self.v_junk, self.v_l128, self.WS, self.s_oflag)
        k.vm.q[-1][2] = set()
        self.set_exec(-1)
        if self.o["noclear"]:
            return
        p = k.v(4)
        for i in range(4):
            k.e("v_mov_b32 %s, -1", p[i])
        k.e("buffer_store_dwordx4 %s, %s, %s, %s offen sc1", p, self.v_l16, self.WS, self.s_kvp)
        k.e("buffer_store_dwordx4 %s, %s, %s, %s offen offset:1024 sc1", p, self.v_hi41, self.WS, self.s_kvp)
        self.t_rlst = k.e("buffer_store_dwordx4 %s, %s, %s, %s offen sc1", p, self.v_lo5, self.WS, self.s_kvf)
        k.release(p)

    def code_prefetch(self):
        k = self.k
        if not self.o["codepf"]:
            return
        st, code, t = self.s_tmp, self.RL, self.v_junk
        k.e("s_getpc_b64 %s\ns_and_b32 %s, %s, 0xffffff80\ns_mov_b32 %s, L_end-L_pc+256\ns_mov_b32 %s, 0x20000", code[0:2], code[0], code[0], code[2], code[3])
        k.put("L_pc")
        k.e("s_lshr_b32 %s, s2, 3\ns_lshl_b32 %s, %s, 2\ns_add_u32 %s, %s, %s\ns_lshl_b32 %s, %s, 7", st, st, st, st, st, self.s_wv, st, st)
        k.e("v_lshlrev_b32 %s, 14, %s", t, self.v_lane)
        self.set_exec(7)
        k.e("buffer_load_dword %s, %s, %s, %s offen", self.v_junk, t, code, st)
        k.vm.q[-1][2] = set()
        self.set_exec(-1)

    def weight_prefetch(self):
        k = self.k
        if not self.o["wpf"]:
            return
        st, t = self.s_tmp, k.v()
        k.e("s_lshl_b32 %s, s2, 2\ns_add_u32 %s, %s, %s\ns_mul_i32 %s, %s, 25\ns_lshr_b32 %s, %s, 1", st, st, st, self.s_wv, st, st, st, st)
        k.e("v_add_u32 %s, %s, %s\nv_mul_u32_u24 %s, 52429, %s\nv_lshrrev_b32 %s, 20, %s", t, st, self.v_lane, self.v_junk, t, self.v_junk, self.v_junk)
        k.e("v_mul_u32_u24 %s, 1280, %s\nv_lshl_add_u32 %s, %s, 7, %s", self.v_junk, self.v_junk, t, t, self.v_junk)
        self.set_exec((1 << 13) - 1)
        k.e("buffer_load_dword %s, %s, %s, 0 offen offset:1280", self.v_junk, t, self.WQKV)
        k.vm.q[-1][2] = set()
        self.set_exec(-1)
        k.release(t)

    def touch_lines(self, base, per_wave_lines):
        k = self.k
        if not self.o["touch"]:
            return
        st = self.s_tmp
        k.e("s_mul_i32 %s, %s, %d\ns_add_u32 %s, %s, 0x%x", st, self.s_gcw, per_wave_lines * 128, st, st, base)
        self.set_exec((1 << per_wave_lines) - 1)
        k.e("buffer_load_dword %s, %s, %s, %s offen%s", self.v_junk, self.v_l128, self.WS, st, " nt" if self.o["tnt"] else " sc1")
        k.vm.q[-1][2] = set()
        self.set_exec(-1)

    def relayout_setup(self):
        k = self.k
        for n in ("cpr", "magic", "pitch", "b0", "dl", "col", "dst", "big", "row", "tst", "wst"):
            setattr(self, "s_r" + n, k.s())
        u, a, b, c2 = "s2", self.s_tmp, self.s_tmp2, k.s()
        hf = k.s()
        l_w2, l_w1, l_oh, l_go, l_wq = (k.label("L_rl") for _ in range(5))
        k.e("s_cmp_ge_u32 %s, 216\ns_cbranch_scc1 %s", u, l_wq)
        k.e("s_cmp_ge_u32 %s, 136\ns_cbranch_scc1 %s\ns_cmp_ge_u32 %s, 40\ns_cbranch_scc1 %s", u, l_w1, u, l_w2)
        p = self.ptr

        def five_wide():
            k.e("s_mov_b32 %s, 40\ns_mov_b32 %s, 1639\ns_mov_b32 %s, 1280\ns_mul_i32 %s, %s, 640\ns_mov_b32 %s, 3072",
                self.s_rcpr, self.s_rmagic, self.s_rpitch, self.s_rcol, hf, self.s_rbig)
            k.e("s_mov_b32 %s, 640\ns_mov_b32 %s, 8\ns_mov_b32 %s, 160", self.s_rrow, self.s_rtst, self.s_rwst)

        self.srd(self.RL, p[6:8], 819200)
        k.e("s_mul_i32 %s, %s, 205\ns_lshr_b32 %s, %s, 11\ns_mul_i32 %s, %s, 10\ns_sub_u32 %s, %s, %s",
            a, u, a, a, b, a, b, u, b)
        k.e("s_and_b32 %s, %s, 1\ns_lshr_b32 %s, %s, 1", hf, b, b, b)
        five_wide()
        k.e("s_lshl_b32 %s, %s, 2\ns_add_u32 %s, %s, %s\ns_lshl_b32 %s, %s, 2\ns_add_u32 %s, %s, %s",
            c2, hf, c2, c2, self.s_wv, c2, c2, c2, c2, a)
        k.e("s_mul_i32 %s, %s, 5\ns_add_u32 %s, %s, %s\ns_mul_i32 %s, %s, 5120\ns_add_u32 %s, %s, 0x%x",
            c2, c2, c2, c2, b, c2, c2, self.s_rdst, c2, WO_OFF)
        k.e("s_branch %s", l_oh)

        k.put(l_w2)
        self.srd(self.RL, p[12:14], 1966080)
        k.e("s_sub_u32 %s, %s, 40\ns_mul_i32 %s, %s, 171\ns_lshr_b32 %s, %s, 12\ns_mul_i32 %s, %s, 24\ns_sub_u32 %s, %s, %s",
            c2, u, a, c2, a, a, b, a, b, c2, b)
        k.e("s_and_b32 %s, %s, 1\ns_lshr_b32 %s, %s, 1", hf, b, b, b)
        five_wide()
        k.e("s_lshl_b32 %s, %s, 2\ns_add_u32 %s, %s, %s\ns_lshl_b32 %s, %s, 2\ns_add_u32 %s, %s, %s",
            c2, hf, c2, c2, self.s_wv, c2, c2, c2, c2, a)
        k.e("s_mul_i32 %s, %s, 12\ns_add_u32 %s, %s, %s\ns_mul_i32 %s, %s, 5120\ns_add_u32 %s, %s, 0x%x",
            c2, c2, c2, c2, b, c2, c2, self.s_rdst, c2, W2_OFF)
        k.e("s_lshl_b32 %s, %s, 1\ns_cmp_ge_u32 %s, 6\ns_cselect_b32 %s, 6, 0\ns_addc_u32 %s, %s, 0\ns_sub_u32 %s, %s, %s",
            a, a, b, c2, a, a, b, b, c2)
        k.e("s_mul_i32 %s, %s, 192\ns_mul_i32 %s, %s, 48\ns_mul_i32 %s, %s, 96\ns_sub_u32 %s, %s, 352",
            a, a, c2, b, hf, b, hf, hf)
        k.e("s_cmp_ge_u32 %s, 4\ns_cselect_b32 %s, %s, %s\ns_cselect_b32 %s, 48, 16\ns_add_u32 %s, %s, %s",
            b, c2, hf, c2, self.s_rdl, a, a, c2)
        k.e("s_lshl_b32 %s, %s, 2\ns_add_u32 %s, %s, %s\ns_branch %s", c2, self.s_wv, self.s_rb0, a, c2, l_go)

        k.put(l_wq)
        self.srd(self.RL, p[2:4], 2457600)
        k.e("s_sub_u32 %s, %s, 216\ns_and_b32 %s, %s, 1\ns_lshr_b32 %s, %s, 1", b, u, hf, b, b, b)
        five_wide()
        k.e("s_mov_b32 %s, 3840\ns_mov_b32 %s, 4", self.s_rpitch, self.s_rdl)
        k.e("s_lshl_b32 %s, %s, 2\ns_add_u32 %s, %s, %s\ns_mul_i32 %s, %s, 20\ns_add_u32 %s, %s, %s", c2, hf, c2, c2, self.s_wv, c2, c2, c2, c2, b)
        k.e("s_mul_i32 %s, %s, 5120\ns_add_u32 %s, %s, 0x%x", c2, c2, self.s_rdst, c2, WQ_OFF)
        k.e("s_lshl_b32 %s, %s, 2\ns_add_u32 %s, %s, %s\ns_lshl_b32 %s, %s, 3\ns_branch %s", b, b, b, b, self.s_wv, self.s_rb0, b, l_go)

        k.put(l_w1)
        self.srd(self.RL, p[10:12], 1966080)
        k.e("s_sub_u32 %s, %s, 136\ns_and_b32 %s, %s, 3\ns_lshr_b32 %s, %s, 2", c2, u, hf, c2, c2, c2)
        k.e("s_mov_b32 %s, 48\ns_mov_b32 %s, 1366\ns_mov_b32 %s, 3072\ns_mul_i32 %s, %s, 768\ns_mov_b32 %s, 61440",
            self.s_rcpr, self.s_rmagic, self.s_rpitch, self.s_rcol, hf, self.s_rbig)
        k.e("s_mov_b32 %s, 768\ns_mov_b32 %s, 32\ns_mov_b32 %s, 192", self.s_rrow, self.s_rtst, self.s_rwst)
        k.e("s_lshl_b32 %s, %s, 2\ns_add_u32 %s, %s, %s\ns_mul_i32 %s, %s, 40\ns_add_u32 %s, %s, %s",
            hf, hf, hf, hf, self.s_wv, hf, hf, hf, hf, c2)
        k.e("s_mul_i32 %s, %s, 3072\ns_add_u32 %s, %s, 0x%x", hf, hf, self.s_rdst, hf, W1_OFF)
        k.e("s_mul_i32 %s, %s, 205\ns_lshr_b32 %s, %s, 10\ns_mul_i32 %s, %s, 5\ns_sub_u32 %s, %s, %s",
            a, c2, a, a, b, a, b, c2, b)

        k.put(l_oh)
        k.e("s_mul_i32 %s, %s, 160\ns_lshl_b32 %s, %s, 3\ns_add_u32 %s, %s, %s", a, a, c2, b, a, a, c2)
        k.e("s_cmp_ge_u32 %s, 3\ns_cselect_b32 %s, 56, 0\ns_add_u32 %s, %s, %s", b, c2, a, a, c2)
        k.e("s_cmp_eq_u32 %s, 2\ns_cselect_b32 %s, 80, 4", b, self.s_rdl)
        k.e("s_mul_i32 %s, %s, 20\ns_add_u32 %s, %s, %s", c2, self.s_wv, self.s_rb0, a, c2)

        k.put(l_go)
        t, pl, ch = k.v(), k.v(), k.v()
        self.v_rl = k.v(6, align=1)
        for n in range(6):
            d = self.v_rl[n]
            k.e("v_add_u32 %s, %d, %s\nv_mul_u32_u24 %s, %s, %s\nv_lshrrev_b32 %s, 16, %s", t, 64 * n, self.v_lane, pl, self.s_rmagic, t, pl, pl)
            k.e("v_mul_u32_u24 %s, %s, %s\nv_sub_u32 %s, %s, %s", ch, self.s_rcpr, pl, ch, t, ch)
            k.e("v_lshrrev_b32 %s, 2, %s\nv_and_b32 %s, 3, %s\nv_mad_u32_u24 %s, %s, %s, %s\nv_add_u32 %s, %s, %s",
                t, pl, pl, pl, t, t, self.s_rdl, pl, t, self.s_rb0, t)
            k.e("v_mul_u32_u24 %s, %s, %s\nv_lshl_add_u32 %s, %s, 4, %s", t, self.s_rpitch, t, d, ch, t)
        self.s_rcol6, self.s_rm0 = self.s_rmagic, self.s_rpitch
        k.e("s_cmp_eq_u32 %s, 40\ns_cselect_b32 %s, 0x%x, %s", self.s_rcpr, self.s_rcol6, FAR, self.s_rcol)
        k.e("s_mul_i32 %s, %s, 6144\ns_add_u32 %s, %s, %d", self.s_rm0, self.s_wv, self.s_rm0, self.s_rm0, RLS)
        k.release(t, pl, ch, c2, hf, self.s_rb0, self.s_rdl)

    def relayout_load(self):
        k = self.k

        def piece(n):
            k.e("s_add_u32 m0, %s, %d", self.s_rm0, 1024 * n)
            return k.e("buffer_load_dwordx4 %s, %s, %s offen%s lds", self.v_rl[n], self.RL, self.s_rcol if n < 5 else self.s_rcol6,
                       " nt" if self.o["rlnt"] else "")
        for n in range(6):
            self.b_rl = k.bg_push(lambda n=n: piece(n), 110)

    def relayout_store(self):
        k = self.k
        k.release(self.v_rl, self.s_rcol, self.s_rcol6, self.s_rm0)
        a0, a1 = k.v(), k.v()
        fr = k.v(24)
        st, s2 = self.s_tmp, self.s_tmp2
        k.e("s_cmp_eq_u32 %s, 40\ns_cselect_b32 %s, 40, 8", self.s_rcpr, st)
        k.e("v_mul_u32_u24 %s, 6144, %s\nv_mad_u32_u24 %s, %s, %s, %s\nv_mad_u32_u24 %s, %s, %s, %s",
            a0, self.v_g, a0, self.v_r, self.s_rrow, a0, a0, self.v_cc, st, a0)
        k.e("s_mul_i32 %s, %s, %s\ns_add_u32 %s, %s, %d\nv_add_u32 %s, %s, %s", st, self.s_rwst, self.s_wv, st, st, RLS, a0, st, a0)
        k.e("s_lshl_b32 %s, %s, 2\nv_add_u32 %s, %s, %s", st, self.s_rrow, a1, st, a0)
        for n in range(6):
            k.e("ds_read_b64_tr_b16 %s, %s\nds_read_b64_tr_b16 %s, %s", fr[4 * n:4 * n + 2], a0, fr[4 * n + 2:4 * n + 4], a1)
            if n < 5:
                k.e("v_add_u32 %s, %s, %s\nv_add_u32 %s, %s, %s", a0, self.s_rtst, a0, a1, self.s_rtst, a1)
        k.e("s_add_u32 %s, %s, %s\ns_cmp_eq_u32 %s, 40\ns_cselect_b32 %s, 0x%x, %s", st, self.s_rdst, self.s_rbig, self.s_rcpr, s2, FAR, st)
        for n in range(6 if not self.o["norl"] else 1):
            self.t_rlst = k.e("buffer_store_dwordx4 %s, %s, %s, %s offen offset:%d sc1",
                              fr[4 * n:4 * n + 4], self.v_l16, self.WS, self.s_rdst if n < 3 else (st if n < 5 else s2), 1024 * (n % 3))
        if self.o["dup"]:
            k.e("s_add_u32 %s, %s, 0x1300000", st, self.s_rdst)
            for n in range(4):
                k.e("buffer_store_dwordx4 %s, %s, %s, %s offen offset:%d sc1", fr[4 * n:4 * n + 4], self.v_l16, self.WS, st, 1024 * n)
        k.release(a0, a1, fr, self.s_rcpr, self.s_rdst, self.s_rbig, self.s_rrow, self.s_rtst, self.s_rwst)

    def w_dma(self, n, now=True):
        k = self.k
        if n > 14 or n in self.b_w:
            return
        sb = self.s_bg

        def piece(i):
            if n < 10:
                if i == 0:
                    k.e("s_add_u32 %s, %s, %d", sb, self.s_wcol, MAT[n // 5] + (n % 5) * 4 * 122880)
                k.e("s_add_u32 m0, %s, %d", self.s_m0w, SLOT[n % 6] + 1024 * i)
                return k.e("buffer_load_dwordx4 %s, %s, %s offen lds", self.v_wd[i], self.WQKV, sb)
            if i == 0:
                k.e("s_add_u32 %s, %s, %d\ns_add_u32 m0, %s, %d", sb, self.s_wq, 20480 * (n - 10), self.s_m0w, SLOT[n % 6])
            if i == 4:
                k.e("s_add_u32 %s, %s, 4096\ns_add_u32 m0, %s, %d", sb, sb, self.s_m0w, SLOT[n % 6] + 4096)
            return k.e("buffer_load_dwordx4 %s, %s, %s offen offset:%d sc1 lds", self.v_l16, self.WS, sb, 1024 * (i % 4))
        for i in range(5):
            self.b_w[n] = k.bg_push(lambda i=i: piece(i), 160 if n < 10 else 100)
        if now:
            k.bg_flush(self.b_w[n])

    def ln1(self):
        k = self.k
        self.xf = xf = k.v(80)
        self.xr = k.v(10)
        ad, t, u = k.v(4, align=1), k.v(), k.v()
        st = self.s_tmp
        k.e("s_mul_i32 %s, %s, 20480\nv_mul_u32_u24 %s, 1280, %s\nv_add_u32 %s, %s, %s", st, self.s_wv, u, self.v_s, u, st, u)
        k.e("v_xor_b32 %s, %s, %s\nv_lshl_add_u32 %s, %s, 4, %s", t, self.v_g, self.v_s, ad[0], t, u)
        for i in range(1, 4):
            k.e("v_xor_b32 %s, %d, %s", ad[i], 64 * i, ad[0])
        ra = k.v(5, align=1)
        k.e("s_mul_i32 %s, %s, 160", st, self.s_c)
        for i in range(5):
            k.e("v_mad_u32_u24 %s, %s, 40, %s\nv_add_u32 %s, %d, %s", t, self.v_g, st, t, 8 * i, t)
            k.e("v_lshlrev_b32 %s, 4, %s\nv_xor_b32 %s, %s, %s\nv_add_u32 %s, %s, %s", ra[i], self.v_s, t, t, ra[i], ra[i], t, u)
        k.e("s_waitcnt lgkmcnt(0)\ns_add_u32 %s, %s, 1\nv_mov_b32 %s, %s", self.s_tag[0], self.s_tag[0], self.v_tag, self.s_tag[0])
        k.e("s_lshl_b32 %s, %s, 16\ns_lshr_b32 %s, %s, 16\ns_or_b32 %s, %s, %s\ns_andn2_b32 %s, %s, 7",
            st, self.s_tag[0], self.s_tag[1], self.s_tag[0], self.s_tag[1], self.s_tag[1], st, self.s_tag[1], self.s_tag[1])
        k.wait_vm(self.t_x)
        self.stamp("x landed")
        for j in range(20):
            k.e("ds_read_b128 %s, %s offset:%d", xf[4 * j:4 * j + 4], ad[j & 3], XS + 256 * (j >> 2))
        for i in range(5):
            k.e("ds_read_b64 %s, %s offset:%d", self.xr[2 * i:2 * i + 2], ra[i], XS)
        k.release(ad, ra)
        a, b, ones = k.v(), k.v(), k.v()
        k.e("v_mov_b32 %s, 0\nv_mov_b32 %s, 0\nv_mov_b32 %s, 0x3f803f80", a, b, ones)
        for i in range(80):
            k.e("v_dot2c_f32_bf16 %s, %s, %s\nv_dot2c_f32_bf16 %s, %s, %s", a, xf[i], ones, b, xf[i], xf[i])
        self.reduce2(a, b)
        k.wait_bg(self.b_rl)
        k.barrier()
        self.stamp("rl bar")
        k.bg_now(self.o["k_early"])
        self.relayout_store()
        self.clears()
        self.stamp("rl st")
        k.spread(10, 1300 - self.o["k_delay"], self.o["k_delay"])
        sc = k.v(2)
        self.mean_rstd(a, b, sc[0])
        k.e("v_mul_f32 %s, %s, %s\nv_sub_f32 %s, 0, %s", sc[1], a, sc[0], sc[1], sc[1])
        tp = k.v(8)
        for i in range(80):
            p = tp[2 * (i & 3):2 * (i & 3) + 2]
            k.e("v_lshlrev_b32 %s, 16, %s\nv_and_b32 %s, 0xffff0000, %s", p[0], xf[i], p[1], xf[i])
            k.e("v_pk_fma_f32 %s, %s, %s, %s op_sel:[0,0,1] op_sel_hi:[1,0,1]", p, p, sc, sc)
            k.e("v_cvt_pk_bf16_f32 %s, %s, %s", xf[i], p[0], p[1])
            k.tick()
        k.release(a, b, ones, sc, tp, t, u)
        self.dump("xn", xf)

    def mean_rstd(self, a, b, rstd):
        k = self.k
        k.e("v_mul_f32 %s, 0x3acccccd, %s\nv_mul_f32 %s, 0x3acccccd, %s", a, a, b, b)
        k.e("v_fma_f32 %s, -%s, %s, %s\nv_max_f32 %s, 0, %s\nv_add_f32 %s, 0x3727c5ac, %s\nv_rsq_f32 %s, %s",
            b, a, a, b, b, b, b, b, rstd, b)

    def gemm_matrix(self, n0, acc, hook):
        k = self.k
        buf = self.abuf
        last = {}

        def reads(j, t):
            n, jj = n0 + j // 4, j % 4
            d = buf[20 * (j % 3) + 4 * t:20 * (j % 3) + 4 * t + 4]
            if n >= 10:
                o = SLOT[n % 6] + jj * 5120 + 1024 * t
                last[j] = k.e("ds_read_b128 %s, %s offset:%d", d, self.v_qr[o >> 16], o & 0xFFFF)
            else:
                for e in range(2):
                    o = SLOT[n % 6] + jj * 5120 + 8 * t + 1280 * e
                    last[j] = k.e("ds_read_b64_tr_b16 %s, %s offset:%d", d[2 * e:2 * e + 2], self.v_wr[o >> 16], o & 0xFFFF)

        def enter(n):
            k.wait_bg(self.b_w[n])
            if n == min(self.o["init_at"], 4):
                k.wait_vm(self.t_rlst)
            k.barrier(drain=False)
            if self.o["fine"]:
                self.stamp("bar %d" % n)
            hook(n)

        enter(n0)
        for j in range(2):
            for t in range(5):
                reads(j, t)
        for j in range(20):
            if j + 2 < 20 and (j + 2) % 4 == 0:
                enter(n0 + (j + 2) // 4)
            k.wait_ds(last[j])
            for t in range(5):
                self.mfma(acc[4 * t:4 * t + 4], buf[20 * (j % 3) + 4 * t:20 * (j % 3) + 4 * t + 4],
                          self.xf[4 * j:4 * j + 4], 0 if j == 0 else None)
                if j + 2 < 20:
                    reads(j + 2, t)
                k.tick()

    def wphi_frags(self):
        k = self.k
        wf = self.wf = k.a(60, at=196)
        ad, t = k.v(), k.v()
        k.e("v_mul_u32_u24 %s, 800, %s\nv_mad_u32_u24 %s, %s, 40, %s\nv_add_u32 %s, %d, %s", t, self.v_g, t, self.v_r, t, t, WPH, t)
        k.e("v_cmp_eq_u32 vcc, %s, %s\nv_mov_b32 %s, %d\nv_cndmask_b32 %s, %s, %s, vcc", self.v_g, self.v_cc, ad, ZERO, ad, ad, t)
        for u in range(3):
            for t5 in range(5):
                d = wf[4 * (5 * u + t5):4 * (5 * u + t5) + 4]
                k.e("ds_read_b64_tr_b16 %s, %s offset:%d", d[0:2], ad, 320 * u + 8 * t5)
                if u < 2:
                    k.e("ds_read_b64_tr_b16 %s, %s offset:%d", d[2:4], ad, 320 * u + 160 + 8 * t5)
                else:
                    k.e("v_accvgpr_write_b32 %s, 0\nv_accvgpr_write_b32 %s, 0", d[2], d[3])
        k.drain_ds()
        k.release(ad, t)

    def phi(self, acc, name):
        k = self.k
        kb, wf = k.v(12), self.wf
        k.e("v_mov_b32 %s, 0\nv_mov_b32 %s, 0", kb[10], kb[11])
        k.tick()
        for i in range(10):
            k.e("v_cvt_pk_bf16_f32 %s, %s, %s", kb[i], acc[2 * i], acc[2 * i + 1])
        p = acc
        for u in range(3):
            for t in range(5):
                self.mfma(p[4 * t:4 * t + 4], wf[4 * (5 * u + t):4 * (5 * u + t) + 4], kb[4 * u:4 * u + 4], 0 if u == 0 else None)
                k.tick()
        k.release(kb)
        self.dump(name, p)
        m = k.v(2)
        k.e("v_max3_f32 %s, %s, %s, %s\nv_min3_f32 %s, %s, %s, %s", m[0], p[0], p[1], p[2], m[1], p[0], p[1], p[2])
        for i in range(3, 19, 2):
            k.e("v_max3_f32 %s, %s, %s, %s\nv_min3_f32 %s, %s, %s, %s", m[0], m[0], p[i], p[i + 1], m[1], m[1], p[i], p[i + 1])
        k.e("v_max_f32 %s, %s, %s\nv_min_f32 %s, %s, %s", m[0], m[0], p[19], m[1], m[1], p[19])
        k.e("v_pk_mul_f32 %s, %s, %s", m, m, self.s_L)
        e = k.v(40)
        for i in range(10):
            q = p[2 * i:2 * i + 2]
            k.e("v_pk_fma_f32 %s, %s, %s, %s op_sel_hi:[1,1,0] neg_lo:[0,0,1] neg_hi:[0,0,1]", e[2 * i:2 * i + 2], q, self.s_L, m)
            k.e("v_pk_fma_f32 %s, %s, %s, %s op_sel:[0,0,1] op_sel_hi:[1,1,1] neg_lo:[1,0,0] neg_hi:[1,0,0]",
                e[20 + 2 * i:22 + 2 * i], q, self.s_L, m)
            k.tick()
        for i in range(40):
            k.e("v_exp_f32 %s, %s", e[i], e[i])
            k.tick()
        sm = k.v(4)
        for h in range(2):
            s2 = sm[2 * h:2 * h + 2]
            k.e("v_pk_add_f32 %s, %s, %s", s2, e[20 * h:20 * h + 2], e[20 * h + 2:20 * h + 4])
            for i in range(2, 10):
                k.e("v_pk_add_f32 %s, %s, %s", s2, s2, e[20 * h + 2 * i:20 * h + 2 * i + 2])
        k.e("v_add_f32 %s, %s, %s\nv_add_f32 %s, %s, %s", m[0], sm[0], sm[1], m[1], sm[2], sm[3])
        k.e("v_rcp_f32 %s, %s\nv_rcp_f32 %s, %s", m[0], m[0], m[1], m[1])
        for i in range(20):
            q = e[2 * i:2 * i + 2]
            sel = "op_sel_hi:[1,0]" if i < 10 else "op_sel:[0,1] op_sel_hi:[1,1]"
            k.e("v_pk_mul_f32 %s, %s, %s %s", q, q, m, sel)
            k.tick()
        for i in range(20):
            k.e("v_cvt_pk_bf16_f32 %s, %s, %s", p[i], e[2 * i], e[2 * i + 1])
            k.tick()
        k.release(m, e, sm)
        return p

    def phase_a(self):
        k, o = self.k, self.o
        self.b_w = {}
        self.w_dma(0, now=False)
        self.w_dma(1, now=False)
        self.v_wr, self.v_qr = k.v(3, align=1), k.v(3, align=1)
        t = k.v()
        k.e("v_lshrrev_b32 %s, 1, %s\nv_lshl_add_u32 %s, %s, 4, %s\nv_and_b32 %s, 1, %s\nv_lshl_add_u32 %s, %s, 2, %s",
            t, self.v_g, self.v_wr[0], t, self.v_r, t, self.v_g, t, t, self.v_wr[0])
        self.v_tok = k.v()
        k.e("v_mov_b32 %s, %s\nv_mul_u32_u24 %s, 160, %s\nv_mad_u32_u24 %s, %s, 40, %s", self.v_tok, t, t, t, self.v_wr[0], self.v_cc, t)
        k.e("v_add_u32 %s, 0x10000, %s\nv_add_u32 %s, 0x20000, %s", self.v_wr[1], self.v_wr[0], self.v_wr[2], self.v_wr[0])
        k.e("v_mov_b32 %s, %s\nv_add_u32 %s, 0x10000, %s\nv_add_u32 %s, 0x20000, %s",
            self.v_qr[0], self.v_l16, self.v_qr[1], self.v_l16, self.v_qr[2], self.v_l16)
        self.s_wq = k.s()
        k.e("s_mul_i32 %s, %s, 102400\ns_add_u32 %s, %s, %s\ns_add_u32 %s, %s, 0x%x",
            self.s_wq, self.s_c, self.s_wq, self.s_wq, self.s_m0w, self.s_wq, self.s_wq, WQ_OFF)
        k.release(t)
        self.ln1()
        self.stamp("ln1")
        self.abuf = k.v(60)
        acc = k.v(20)
        st = self.s_tmp

        def hook(n):
            for m in range(2, o["look"] + 1):
                if n + m < 10 and (n + m < 4 or n >= 1):
                    self.w_dma(n + m)
            if n == 0:
                self.tables_to_lds()
            if n == o["init_at"] and n < 5:
                self.signal_init()
            if n == 1:
                self.wphi_frags()
            if n == o["tch_at"]:
                for a in ((O_OFF, 20), (H_OFF, 20), (F_OFF, 48), (HS_OFF, 1)):
                    self.touch_lines(*a)
            if n == o["q0"] - 2:
                self.init_load()
            if n == o["q0"]:
                self.init_check()
                self.w_dma(10)
            if n == o["s1_use"]:
                self.kv_reduce()
            if n == o["s1_at"]:
                self.kv_reduce_load()
            if n == o["fin_at"]:
                self.kv_final_load()
            if n >= 10:
                self.w_dma(n + 2)
            if n == 12:
                self.queue_wo()
                k.spread(o["n_q"], 800)

        self.gemm_matrix(0, acc, hook)
        self.stamp("K gemm")
        self.dump("k", acc)
        if o["init_at"] == 5:
            self.signal_init()
        self.w_dma(7, now=False)
        self.w_dma(8, now=False)
        k.spread(10, 900, 100)
        ph = self.phi(acc, "pk")
        self.dump("phik", ph)
        t, wtr = k.v(), k.v()
        k.e("s_lshl_b32 %s, %s, 4\nv_add_u32 %s, %s, %s\nv_mul_u32_u24 %s, %d, %s", st, self.s_wv, wtr, st, self.v_s, wtr, TRP, wtr)
        k.e("v_mul_u32_u24 %s, 80, %s\nv_add_u32 %s, %s, %s", t, self.v_g, t, t, wtr)
        for i in range(5):
            k.e("ds_write_b128 %s, %s offset:%d", t, ph[4 * i:4 * i + 4], TR + 16 * i)
        self.stamp("phi k")
        k.bg_flush(self.b_w[8])
        self.w_dma(9, now=False)
        k.spread(5, 300)
        self.gemm_matrix(5, acc, hook)
        self.stamp("V gemm")
        self.dump("v", acc)
        vb = k.v(12)
        k.e("v_mov_b32 %s, 0x3f80\nv_mov_b32 %s, 0\nv_mad_u32_u24 %s, %s, 48, %s", vb[10], vb[11], t, self.v_g, wtr)
        for i in range(10):
            k.e("v_cvt_pk_bf16_f32 %s, %s, %s", vb[i], acc[2 * i], acc[2 * i + 1])
        for i in range(3):
            k.e("ds_write_b128 %s, %s offset:%d", t, vb[4 * i:4 * i + 4], TR + 320 + 16 * i)
        k.release(vb, t, wtr)
        self.kv_partial()
        self.stamp("kv partial")
        self.w_dma(11)
        self.gemm_matrix(10, acc, hook)
        self.stamp("Q gemm")
        self.dump("q", acc)
        k.release(self.abuf, self.xf, self.v_wr, self.v_qr, self.v_wd, self.s_wq)
        k.spread(o["n_phq"], 1000)
        self.phq = self.phi(acc, "pq")
        k.release(self.wf)
        self.dump("phiq", self.phq)
        self.stamp("phi q")

    def tables_to_lds(self):
        k = self.k
        t, z = k.v(), k.v(2)
        k.e("v_lshlrev_b32 %s, 3, v0\nv_mov_b32 %s, 0\nv_mov_b32 %s, 0\nv_add_u32 %s, %d, %s", t, z[0], z[1], t, ZERO, t)
        k.e("ds_write_b64 %s, %s", t, z)
        k.e("v_lshlrev_b32 %s, 4, v0\nv_min_u32 %s, 3200, %s\nv_add_u32 %s, %d, %s", t, t, t, t, WPH, t)
        k.e("ds_write_b128 %s, %s", t, self.v_wphi)
        k.release(t, z, self.v_wphi, self.v_wpa)

    def signal_init(self):
        k = self.k
        lab = self.wave_is(3)
        t = k.v(2)
        st = self.s_tmp
        k.e("s_getreg_b32 %s, hwreg(HW_REG_XCC_ID, 0, 3)\ns_or_b32 %s, %s, %s\nv_mov_b32 %s, %s\nv_mov_b32 %s, %s",
            st, st, st, self.s_tag[1], t[0], self.s_tag[0], t[1], st)
        k.e("s_lshl_b32 %s, %s, 3\ns_add_u32 %s, %s, %s\ns_lshl_b32 %s, %s, 3\ns_add_u32 %s, %s, 0x%x",
            st, self.s_G, st, st, self.s_c, st, st, st, st, READY_OFF)
        self.set_exec(1)
        k.e("buffer_store_dwordx2 %s, %s, %s, %s offen sc1", t, self.v_zero, self.WS, st)
        self.set_exec(-1)
        k.release(t)
        self.close(lab)

    def check_loop(self, test, reload):
        k = self.k
        top, ok = k.label("L_chk"), k.label("L_ok")
        k.e("s_mov_b32 %s, 0", self.s_spin)
        k.put(top)
        test()
        k.e("s_cbranch_vccz %s\ns_add_u32 %s, %s, 1\ns_cmp_gt_u32 %s, %d\ns_cbranch_scc1 %s", ok, self.s_spin, self.s_spin, self.s_spin, SPIN, ok)
        k.cond_begin()
        reload()
        k.drain_vm()
        k.cond_end()
        k.e("s_branch %s", top)
        k.put(ok)

    def init_load(self):
        k = self.k
        if not hasattr(self, "v_init"):
            self.v_init = k.v(8)
        k.e("s_mov_b32 %s, 0x%x", self.s_tmp, READY_OFF)
        k.e("buffer_load_dwordx4 %s, %s, %s, %s offen sc1", self.v_init[0:4], self.v_l16, self.WS, self.s_tmp)
        self.t_init = k.e("buffer_load_dwordx4 %s, %s, %s, %s offen offset:1024 sc1", self.v_init[4:8], self.v_l16, self.WS, self.s_tmp)

    def init_check(self):
        k = self.k
        x, u, w = self.v_init, k.v(), k.v()
        k.wait_vm(self.t_init)

        def test():
            for i in range(4):
                k.e("v_xor_b32 %s, %s, %s\nv_lshrrev_b32 %s, 3, %s", w, self.s_tag[1], x[2 * i + 1], w, w)
                if i:
                    k.e("v_or_b32 %s, %s, %s", w, w, u)
                k.e("v_xor_b32 %s, %s, %s\nv_or_b32 %s, %s, %s", u, self.s_tag[0], x[2 * i], u, u, w)
            k.e("v_cmp_ne_u32 vcc, 0, %s", u)
        self.check_loop(test, self.init_load)
        st, s2 = self.s_tmp, self.s_tmp2
        k.e("s_getreg_b32 %s, hwreg(HW_REG_XCC_ID, 0, 3)\ns_or_b32 %s, %s, %s", st, st, st, self.s_tag[1])
        for h in range(2):
            k.e("v_xor_b32 %s, %s, %s\nv_xor_b32 %s, %s, %s\nv_or_b32 %s, %s, %s", u, st, x[4 * h + 1], w, st, x[4 * h + 3], x[4 * h], u, w)
        k.e("s_cmp_ge_u32 %s, 16\ns_cselect_b64 vcc, -1, 0\nv_cndmask_b32 %s, %s, %s, vcc\nv_cmp_ne_u32 vcc, 0, %s", self.s_G, u, x[0], x[4], u)
        k.e("s_and_b32 %s, %s, 15\ns_lshl_b32 %s, %s, 2\ns_lshr_b64 vcc, vcc, %s\ns_and_b32 %s, vcc_lo, 15", st, self.s_G, st, st, st, s2)
        k.e("s_cmp_eq_u32 %s, 0\ns_cselect_b32 %s, %d, 0", s2, self.s_fast, 0 if self.force_slow else 1)
        k.release(x, u, w)
        self.stamp("init seen")

    def kv_partial(self):
        k = self.k
        st = self.s_tmp
        aa, ab, wa, ra = k.v(), k.v(), k.v(), k.v()
        k.e("v_mul_u32_u24 %s, %d, %s\nv_lshl_add_u32 %s, %s, 3, %s", aa, TRP, self.v_tok, aa, self.v_cc, aa)
        k.e("s_mul_i32 %s, %s, 48\ns_add_u32 %s, %s, %d\nv_add_u32 %s, %s, %s", st, self.s_wv, st, st, TR + 320, ab, st, aa)
        k.e("s_mul_i32 %s, %s, 80\ns_add_u32 %s, %s, %d\nv_add_u32 %s, %s, %s", st, self.s_wv, st, st, TR, aa, st, aa)
        k.e("s_mul_i32 %s, %s, 2592\ns_add_u32 %s, %s, %d\nv_add_u32 %s, %s, %s", st, self.s_wv, st, st, KVS, ra, st, self.v_l16)
        k.e("v_mul_u32_u24 %s, 80, %s\nv_lshl_add_u32 %s, %s, 3, %s\nv_add_u32 %s, %s, %s", wa, self.v_s, wa, self.v_g, wa, wa, st, wa)
        k.barrier()
        fa, fb, d = self.abuf[0:24], self.abuf[24:40], k.v(24)
        for ks in range(2):
            for fr, ad, n in ((fa, aa, 3), (fb, ab, 2)):
                for t in range(n):
                    x = fr[4 * (n * ks + t):4 * (n * ks + t) + 4]
                    o = ks * 32 * TRP + 32 * t
                    k.e("ds_read_b64_tr_b16 %s, %s offset:%d\nds_read_b64_tr_b16 %s, %s offset:%d", x[0:2], ad, o, x[2:4], ad, o + 8 * TRP)
        order = [(2, 0), (2, 1), (0, 0), (0, 1), (1, 0), (1, 1)]
        for ks in range(2):
            for tf, td in order:
                self.mfma(d[4 * (2 * tf + td):4 * (2 * tf + td) + 4], fa[4 * (3 * ks + tf):4 * (3 * ks + tf) + 4],
                          fb[4 * (2 * ks + td):4 * (2 * ks + td) + 4], 0 if ks == 0 else None)
        pk = self.abuf[40:52]
        for i, (tf, td) in enumerate(order):
            x = d[4 * (2 * tf + td):4 * (2 * tf + td) + 4]
            k.e("v_cvt_pk_bf16_f32 %s, %s, %s\nv_cvt_pk_bf16_f32 %s, %s, %s", pk[2 * i], x[0], x[1], pk[2 * i + 1], x[2], x[3])
            k.e("ds_write_b64 %s, %s offset:%d", wa, pk[2 * i:2 * i + 2], 1280 * td + 32 * tf)
        k.e("ds_read_b128 %s, %s\nds_read_b128 %s, %s offset:1024", d[0:4], ra, d[4:8], ra)
        k.e("buffer_store_dwordx4 %s, %s, %s, %s offen sc1", d[0:4], self.v_l16, self.WS, self.s_kvp)
        k.e("buffer_store_dwordx4 %s, %s, %s, %s offen offset:1024 sc1", d[4:8], self.v_hi41, self.WS, self.s_kvp)
        k.release(aa, ab, wa, ra, d, self.v_tok, self.s_kvp)

    def poison_test(self, x, m):
        k = self.k
        k.e("v_max3_u32 %s, %s, %s, %s", m, x[0], x[1], x[2])
        for i in range(3, x.n - 1, 2):
            k.e("v_max3_u32 %s, %s, %s, %s", m, m, x[i], x[i + 1])
        k.e("v_max_u32 %s, %s, %s\nv_cmp_eq_u32 vcc, -1, %s", m, m, x[x.n - 1], m)

    def kv_reduce_load(self):
        k = self.k
        st = self.s_tmp
        if not hasattr(self, "v_kx"):
            self.v_kx, self.v_ka = k.v(16), k.v()
            t, u = self.v_kx[0], self.v_kx[1]
            k.e("v_lshrrev_b32 %s, 3, %s\nv_mul_u32_u24 %s, %d, %s\nv_and_b32 %s, 7, %s\nv_lshl_add_u32 %s, %s, 4, %s",
                t, self.v_lane, t, 4 * KVH, t, u, self.v_lane, t, u, t)
            k.e("v_cmp_gt_u32 vcc, 5, %s\nv_mov_b32 %s, 0x%x\nv_cndmask_b32 %s, %s, %s, vcc", u, u, FAR, self.v_ka, u, t)
        k.e("s_mul_i32 %s, %s, %d\ns_add_u32 %s, %s, %s\ns_add_u32 %s, %s, 0x%x", st, self.s_c, 128 * KVH, st, st, self.s_kvrow, st, st, KVP_OFF)
        for i in range(4):
            self.t_kx = k.e("buffer_load_dwordx4 %s, %s, %s, %s offen sc1", self.v_kx[4 * i:4 * i + 4], self.v_ka, self.WS, st)
            if i < 3:
                k.e("s_add_u32 %s, %s, %d", st, st, 32 * KVH)

    def kv_reduce(self):
        k = self.k
        x, m, a, p = self.v_kx, k.v(), k.v(8), k.v(4)
        k.wait_vm(self.t_kx)
        self.check_loop(lambda: self.poison_test(x, m), self.kv_reduce_load)
        self.stamp("kvp seen")
        for i in range(16):
            d = a[2 * (i & 3):2 * (i & 3) + 2] if i < 4 else p[2 * (i & 1):2 * (i & 1) + 2]
            k.e("v_lshlrev_b32 %s, 16, %s\nv_and_b32 %s, 0xffff0000, %s", d[0], x[i], d[1], x[i])
            if i >= 4:
                k.e("v_pk_add_f32 %s, %s, %s", a[2 * (i & 3):2 * (i & 3) + 2], a[2 * (i & 3):2 * (i & 3) + 2], d)
        for i in range(8):
            k.e("v_add_f32_dpp %s, %s, %s row_ror:8 row_mask:0xf bank_mask:0xf", x[i], a[i], a[i])
        for i in range(4):
            self.reduce2(x[2 * i], x[2 * i + 1])
        for i in range(4):
            k.e("v_cvt_pk_bf16_f32 %s, %s, %s", p[i], x[2 * i], x[2 * i + 1])
        k.e("buffer_store_dwordx4 %s, %s, %s, %s offen sc1", p, self.v_lo5, self.WS, self.s_kvf)
        k.release(x, m, a, p, self.v_ka, self.v_lo5, self.s_kvf, self.s_kvrow)
        self.stamp("kv reduced")

    def kv_final_load(self):
        k = self.k
        st = self.s_tmp
        if not hasattr(self, "v_fx"):
            self.v_fx = k.v(8)
        k.e("s_mul_i32 %s, %s, %d\ns_add_u32 %s, %s, 0x%x", st, self.s_cw, KVH, st, st, KVF_OFF)
        k.e("buffer_load_dwordx4 %s, %s, %s, %s offen sc1", self.v_fx[0:4], self.v_l16, self.WS, st)
        self.t_fx = k.e("buffer_load_dwordx4 %s, %s, %s, %s offen offset:1024 sc1", self.v_fx[4:8], self.v_hi41, self.WS, st)

    def attn_out(self):
        k = self.k
        st = self.s_tmp
        x, la, t, u = self.v_fx, k.v(), k.v(), k.v()
        k.e("s_lshl_b32 %s, %s, 11\ns_add_u32 %s, %s, %d\nv_add_u32 %s, %s, %s", st, self.s_wv, st, st, KVL, la, st, self.v_l16)
        k.e("v_mul_u32_u24 %s, 80, %s\nv_lshl_add_u32 %s, %s, 11, %s\nv_add_u32 %s, %d, %s", t, self.v_cc, t, self.v_g, t, t, KVL, t)
        k.e("v_cmp_eq_u32 vcc, %s, %s\nv_mov_b32 %s, %d\nv_cndmask_b32 %s, %s, %s, vcc", self.v_g, self.v_r, u, ZERO, u, u, t)
        k.wait_vm(self.t_fx)
        self.check_loop(lambda: self.poison_test(x, t), self.kv_final_load)
        self.stamp("kvf seen")
        k.e("ds_write_b128 %s, %s\nds_write_b128 %s, %s offset:1024", la, x[0:4], la, x[4:8])
        k.bg_now(self.o["n_att"])
        k.barrier()
        fr, d, ob = [k.v(4) for _ in range(30)], k.v(24), k.v(10)
        order = [(t6, j) for j in range(5) for t6 in (5, 0, 1, 2, 3, 4)]
        rd = lambda i: k.e("ds_read_b128 %s, %s offset:%d", fr[i], u, 320 * order[i][0] + 16 * order[i][1])
        for i in range(12):
            rd(i)
        for i, (t6, j) in enumerate(order):
            self.mfma(d[4 * t6:4 * t6 + 4], fr[i], self.phq[4 * j:4 * j + 4], 0 if j == 0 else None)
            if i + 12 < 30:
                rd(i + 12)
        k.e("v_add_f32 %s, 0x358637bd, %s\nv_rcp_f32 %s, %s", d[20], d[20], d[20], d[20])
        for i in range(10):
            k.e("v_pk_mul_f32 %s, %s, %s op_sel_hi:[1,0]", d[2 * i:2 * i + 2], d[2 * i:2 * i + 2], d[20:22])
        self.dump("o", d[0:20])
        for i in range(10):
            k.e("v_cvt_pk_bf16_f32 %s, %s, %s", ob[i], d[2 * i], d[2 * i + 1])
        self.store_slice(ob, O_OFF)
        k.drain_vm()
        self.set_flag(self.s_oflag, True)
        k.release(x, la, t, u, d, ob, self.phq, self.v_hi41, *fr)
        self.stamp("o stored")

    def store_slice(self, ob, base):
        k = self.k
        st = self.s_tmp
        k.e("s_mul_i32 %s, %s, 2560\ns_add_u32 %s, %s, 0x%x", st, self.s_gcw, st, st, base)

        def fn(fl):
            k.e("buffer_store_dwordx4 %s, %s, %s, %s offen%s", ob[0:4], self.v_l16, self.WS, st, fl)
            k.e("buffer_store_dwordx4 %s, %s, %s, %s offen offset:1024%s", ob[4:8], self.v_l16, self.WS, st, fl)
            k.e("buffer_store_dwordx2 %s, %s, %s, %s offen offset:2048%s", ob[8:10], self.v_l8, self.WS, st, fl)
        self.shared_stores(fn, 1 if base == O_OFF else 2)

    def queue_frags(self, stream, dests, first):
        k = self.k

        def piece(i, d):
            if i and i % 4 == 0:
                k.e("s_add_u32 %s, %s, 4096", stream, stream)
            return k.e("buffer_load_dwordx4 %s, %s, %s, %s offen offset:%d sc1", d, self.v_l16, self.WS, stream, 1024 * (i % 4))
        for i, d in enumerate(dests):
            k.bg_push(lambda i=first + i, d=d: piece(i, d), 100, [d])

    def stream_base(self, base, per_wave):
        k = self.k
        r = k.s()
        k.e("s_mul_i32 %s, %s, %d\ns_add_u32 %s, %s, 0x%x", r, self.s_cw, per_wave * 1024, r, r, base)
        return r

    def queue_wo(self):
        k = self.k
        self.wo = [k.a(4, at=4 * i) for i in range(25)]
        self.s_wo = self.stream_base(WO_OFF, 25)
        self.queue_frags(self.s_wo, self.wo, 0)
        self.w1 = [k.a(4, at=100 + 4 * i) for i in range(24)]
        self.s_w1 = self.stream_base(W1_OFF, 60)
        self.queue_frags(self.s_w1, self.w1, 0)

    def poll_group(self, kind, mine):
        k = self.k
        st = self.s_tmp
        k.e("s_mul_i32 %s, %s, 384\ns_add_u32 %s, %s, 0x%x", st, self.s_G, st, st, FLAG_OFF + 128 * kind)
        if mine:
            k.e("s_lshl_b32 %s, %s, 5\ns_add_u32 %s, %s, %s", self.s_tmp2, self.s_wv, st, st, self.s_tmp2)
        self.poll(self.v_l4, st, 8 if mine else 32)

    def ksplit_gemm(self, wfr, nks, load_tt, RED, extra):
        k = self.k
        acc = k.v(40)
        nbuf = 4 if nks == 5 else 2
        bufs = [k.v(4 * nks) for _ in range(nbuf)]
        stt, wa = self.s_tt, k.v(3, align=1)

        def queue(i):
            for fn, d in load_tt(bufs[i % nbuf], i):
                k.bg_push(fn, 75, [d], front=(nks == 5 or i == 0))
        for i in range(nbuf):
            queue(i)
        k.bg_now(12)
        for i in range(3):
            k.e("s_mul_i32 %s, %s, 15360\ns_add_u32 %s, %s, %d\nv_add_u32 %s, %s, %s",
                self.s_tmp, stt[i], self.s_tmp, self.s_tmp, RED + (2 - i) * 5120, wa[i], self.s_tmp, self.v_l16)
        k.spread(12 + extra if nks == 5 else 100, 1400 if nks == 5 else 7500)
        for i in range(4):
            k.topup = self.o["top"] if nks != 5 else 0
            a = acc[20 * (i & 1):20 * (i & 1) + 20]
            b = bufs[i % nbuf]
            pend = []
            if i:
                prev = acc[20 * ((i - 1) & 1):20 * ((i - 1) & 1) + 20]
                pend = [(wa[i - 1], prev[4 * t:4 * t + 4], 1024 * t) for t in range(5)]
            for ks in range(nks):
                for t in range(5):
                    self.mfma(a[4 * t:4 * t + 4], wfr[5 * ks + t], b[4 * ks:4 * ks + 4], 0 if ks == 0 else None)
                    if pend and ks * 5 + t >= 8 and (ks * 5 + t) % 3 == 2:
                        k.e("ds_write_b128 %s, %s offset:%d", *pend.pop(0))
                    else:
                        k.tick()
            assert not pend
            if i + nbuf < 4:
                queue(i + nbuf)
        k.topup = 0
        k.release(*bufs)
        rd = k.v(60)
        k.e("s_mul_i32 %s, %s, 15360\ns_add_u32 %s, %s, %d\nv_add_u32 %s, %s, %s",
            self.s_tmp, self.s_wv, self.s_tmp, self.s_tmp, RED, wa[0], self.s_tmp, self.v_l16)
        k.barrier()
        for i in range(15):
            k.e("ds_read_b128 %s, %s offset:%d", rd[4 * i:4 * i + 4], wa[0], 1024 * i)
        out = acc[20:40]
        for sl in range(3):
            for i in range(10):
                k.e("v_pk_add_f32 %s, %s, %s", out[2 * i:2 * i + 2], out[2 * i:2 * i + 2], rd[20 * sl + 2 * i:20 * sl + 2 * i + 2])
        k.release(rd, wa, acc[0:20])
        return out

    def tile_bases(self, base, per_wave, per_tile, second):
        k = self.k
        sb = k.s(8, align=1)
        st = self.s_tmp
        k.e("s_lshl_b32 %s, %s, 2\ns_add_u32 %s, %s, %s\ns_mul_i32 %s, %s, %d\ns_add_u32 %s, %s, 0x%x",
            st, self.s_G, st, st, self.s_wv, st, st, per_wave, st, st, base)
        for i in range(4):
            k.e("s_mul_i32 %s, %s, %d\ns_add_u32 %s, %s, %s\ns_add_u32 %s, %s, %d",
                sb[2 * i], self.s_tt[i], per_tile, sb[2 * i], sb[2 * i], st, sb[2 * i + 1], sb[2 * i], second)
        return sb

    def add_packed(self, acc, pk):
        k = self.k
        tp = k.v(4)
        for i in range(10):
            p = tp[2 * (i & 1):2 * (i & 1) + 2]
            k.e("v_lshlrev_b32 %s, 16, %s\nv_and_b32 %s, 0xffff0000, %s", p[0], pk[i], p[1], pk[i])
            k.e("v_pk_add_f32 %s, %s, %s\nv_cvt_pk_bf16_f32 %s, %s, %s", p, p, acc[2 * i:2 * i + 2], pk[i], p[0], p[1])
        k.release(tp)

    def phase_b(self):
        k = self.k
        k.bg_now(self.o["pre_o"])
        self.s_tt = k.s(4, align=1)
        for i in range(4):
            k.e("s_add_u32 %s, %s, %d\ns_and_b32 %s, %s, 3", self.s_tt[i], self.s_wv, 1 + i, self.s_tt[i], self.s_tt[i])
        sb = self.tile_bases(O_OFF, 20480, 2560, 10240)
        self.poll_group(0, True)
        self.stamp("o seen")

        def load_tt(b, i):
            ld = lambda w, d, v, so, off: (lambda: k.e("buffer_load_dwordx%d %s, %s, %s, %s offen offset:%d sc1", w, d, v, self.WS, so, off), d)
            A, B = sb[2 * i], sb[2 * i + 1]
            return [ld(4, b[0:4], self.v_l16, A, 0), ld(4, b[4:8], self.v_l16, A, 1024), ld(2, b[8:10], self.v_l8, A, 2048),
                    ld(2, b[10:12], self.v_l8, B, 2048), ld(4, b[12:16], self.v_l16, B, 0), ld(4, b[16:20], self.v_l16, B, 1024)]
        acc = self.ksplit_gemm(self.wo, 5, load_tt, RED_B, self.o["n_b"])
        self.stamp("wo gemm")
        self.dump("attn", acc)
        self.add_packed(acc, self.xr)
        self.hb = hb = self.xr
        a, b, ones = acc[0], acc[1], acc[2]
        k.e("v_mov_b32 %s, 0\nv_mov_b32 %s, 0\nv_mov_b32 %s, 0x3f803f80", a, b, ones)
        for i in range(10):
            k.e("v_dot2c_f32_bf16 %s, %s, %s\nv_dot2c_f32_bf16 %s, %s, %s", a, hb[i], ones, b, hb[i], hb[i])
        self.reduce2(a, b)
        self.store_slice(hb, H_OFF)
        st = self.s_tmp
        k.e("s_lshl_b32 %s, %s, 7\ns_add_u32 %s, %s, 0x%x", st, self.s_gcw, st, st, HS_OFF)
        self.set_exec(0xFFFF)
        self.shared_stores(lambda fl: k.e("buffer_store_dwordx2 %s, %s, %s, %s offen%s", acc[0:2], self.v_l8, self.WS, st, fl), 2)
        self.set_exec(-1)
        k.drain_vm()
        k.e("s_add_u32 %s, %s, 128", st, self.s_oflag)
        self.set_flag(st, True)
        k.release(acc, sb)
        self.stamp("h stored")

    def phase_c(self, refill):
        k = self.k
        k.bg_now(self.o["pre_h"])
        st, s2 = self.s_tmp, self.s_tmp2
        sh = k.s()
        k.e("s_mul_i32 %s, %s, 81920\ns_add_u32 %s, %s, %s\ns_add_u32 %s, %s, 0x%x", sh, self.s_G, sh, sh, self.s_m0w, sh, sh, H_OFF)
        sx, ad, ss = k.v(16), k.v(), k.s()
        k.e("v_lshlrev_b32 %s, 7, %s\nv_lshl_add_u32 %s, %s, 3, %s", ad, self.v_g, ad, self.v_s, ad)
        k.e("s_lshl_b32 %s, %s, 12\ns_add_u32 %s, %s, 0x%x", ss, self.s_G, ss, ss, HS_OFF)
        acc, bb, self.cs, ones = k.v(48), k.v(32), k.v(12), k.v(4)
        a16, a8 = k.v(2, align=1), k.v(2, align=1)
        k.e("v_add_u32 %s, %d, %s\nv_add_u32 %s, %d, %s", a16[0], HL, self.v_l16, a16[1], HL + 40960, self.v_l16)
        k.e("v_add_u32 %s, %d, %s\nv_add_u32 %s, %d, %s", a8[0], HL, self.v_l8, a8[1], HL + 40960, self.v_l8)
        for i in range(4):
            k.e("v_mov_b32 %s, 0x3f803f80", ones[i])
        self.poll_group(1, False)
        self.stamp("h seen")

        def piece(q, n):
            if n == 0:
                k.e("s_add_u32 m0, %s, %d", self.s_m0w, HL + 20480 * q)
            if n == 4:
                k.e("s_add_u32 %s, %s, 4096\ns_add_u32 m0, %s, %d", sh, sh, self.s_m0w, HL + 20480 * q + 4096)
            t = k.e("buffer_load_dwordx4 %s, %s, %s offen offset:%d sc1 lds", self.v_l16, self.WS, sh, 1024 * (n % 4))
            if n == 4:
                k.e("s_add_u32 %s, %s, 16384", sh, sh)
            return t
        tq = []
        for q in range(4):
            for n in range(5):
                en = k.bg_push(lambda q=q, n=n: piece(q, n), 75, front=1)
            tq.append(en)
        for p in range(8):
            k.bg_push(lambda p=p: k.e("buffer_load_dwordx2 %s, %s, %s, %s offen offset:%d sc1", sx[2 * p:2 * p + 2], ad, self.WS, ss, 512 * p),
                      40, [sx[2 * p:2 * p + 2]], front=1)
        k.bg_now(10)
        k.spread(18 + self.o["n_c"], 240 * self.o["stop_c"])

        def reads(ks, tt):
            q, j = divmod(ks, 5)
            d = bb[16 * (ks & 1) + 4 * tt:16 * (ks & 1) + 4 * tt + 4]
            o = 20480 * (q & 1) + 2560 * tt
            if j == 2:
                k.e("ds_read_b64 %s, %s offset:%d\nds_read_b64 %s, %s offset:%d", d[0:2], a8[q >> 1], o + 2048, d[2:4], a8[q >> 1], o + 10240 + 2048)
            else:
                k.e("ds_read_b128 %s, %s offset:%d", d, a16[q >> 1], o + (0, 1024, 0, 10240, 11264)[j])

        def enter(q):
            k.wait_bg(tq[q])
            k.barrier(drain=False)

        enter(0)
        for tt in range(4):
            reads(0, tt)
        for ks in range(20):
            k.topup = self.o["top"] if ks < self.o["stop_c"] else 0
            if ks % 5 == 4 and ks < 19:
                enter(ks // 5 + 1)
            for t in range(3):
                self.mfma(self.cs[4 * t:4 * t + 4], self.w1[3 * ks + t], ones, 0 if ks == 0 else None)
                k.tick()
            for tt in range(4):
                for t in range(3):
                    self.mfma(acc[12 * tt + 4 * t:12 * tt + 4 * t + 4], self.w1[3 * ks + t],
                              bb[16 * (ks & 1) + 4 * tt:16 * (ks & 1) + 4 * tt + 4], 0 if ks == 0 else None)
                    if t == 0 and ks < 19:
                        reads(ks + 1, tt)
                    else:
                        k.tick()
            refill(ks)
        k.release(ad, ss, sh, ones)
        self.stamp("ffn1 gemm")
        k.release(bb, a16, a8)
        for p in range(1, 8):
            k.e("v_pk_add_f32 %s, %s, %s", sx[0:2], sx[0:2], sx[2 * p:2 * p + 2])
        self.mean_rstd(sx[0], sx[1], sx[2])
        for src, o in ((sx[0], 0), (sx[2], 1)):
            r0, r1, r2, r3 = (sx[4 + 2 * i + o] for i in range(4))
            k.e("v_mov_b32 %s, %s\nv_mov_b32 %s, %s\nv_permlane32_swap_b32 %s, %s", r0, src, r2, src, r0, r2)
            k.e("v_mov_b32 %s, %s\nv_mov_b32 %s, %s\nv_permlane16_swap_b32 %s, %s\nv_permlane16_swap_b32 %s, %s", r1, r0, r3, r2, r0, r1, r2, r3)
        fb = k.v(24)
        for tt in range(4):
            mr = sx[4 + 2 * tt:6 + 2 * tt]
            for i in range(6):
                x = acc[12 * tt + 2 * i:12 * tt + 2 * i + 2]
                k.e("v_pk_fma_f32 %s, %s, %s, %s op_sel_hi:[1,0,1] neg_lo:[1,0,0] neg_hi:[1,0,0]", x, self.cs[2 * i:2 * i + 2], mr, x)
                k.e("v_pk_mul_f32 %s, %s, %s op_sel:[0,1] op_sel_hi:[1,1]", x, x, mr)
                k.e("v_cvt_pk_bf16_f32 %s, %s, %s\nv_pk_max_i16 %s, %s, 0", fb[6 * tt + i], x[0], x[1], fb[6 * tt + i], fb[6 * tt + i])
        self.dump("f", fb)
        k.e("s_lshl_b32 %s, %s, 3\ns_add_u32 %s, %s, %s\ns_mul_i32 %s, %s, 24576\ns_add_u32 %s, %s, 0x%x", st, self.s_G, st, st, self.s_c, st, st, st, st, F_OFF)
        s4, s8 = k.s(), k.s()
        k.e("s_lshl_b32 %s, %s, 10\ns_add_u32 %s, %s, %s", s4, self.s_wv, s4, s4, st)
        k.e("s_lshl_b32 %s, %s, 9\ns_add_u32 %s, %s, %s\ns_add_u32 %s, %s, 4096", s8, self.s_wv, s8, s8, st, s8, s8)

        def fn(fl):
            for tt in range(4):
                k.e("s_add_u32 %s, %s, %d\ns_add_u32 %s, %s, %d", st, s4, 6144 * tt, s2, s8, 6144 * tt)
                k.e("buffer_store_dwordx4 %s, %s, %s, %s offen%s", fb[6 * tt:6 * tt + 4], self.v_l16, self.WS, st, fl)
                k.e("buffer_store_dwordx2 %s, %s, %s, %s offen%s", fb[6 * tt + 4:6 * tt + 6], self.v_l8, self.WS, s2, fl)
        self.shared_stores(fn, 4)
        k.drain_vm()
        k.e("s_add_u32 %s, %s, 256", st, self.s_oflag)
        self.set_flag(st, True)
        k.release(acc, sx, fb, self.cs, s4, s8)
        self.stamp("f stored")

    def phase_d(self):
        k = self.k
        k.bg_now(self.o["pre_f"])
        sb = self.tile_bases(F_OFF, 49152, 6144, 24576)
        self.poll_group(2, True)
        self.stamp("f seen")

        def load_tt(b, i):
            def fn(p, n):
                so = sb[2 * i + p]
                if n < 4:
                    return k.e("buffer_load_dwordx4 %s, %s, %s, %s offen offset:%d sc1", dest(p, n), self.v_l16, self.WS, so, 1024 * n)
                if n == 4:
                    k.e("s_add_u32 %s, %s, 4096", so, so)
                return k.e("buffer_load_dwordx2 %s, %s, %s, %s offen offset:%d sc1", dest(p, n), self.v_l8, self.WS, so, 512 * (n - 4))
            dest = lambda p, n: b[24 * p + 4 * n:24 * p + 4 * n + 4] if n < 4 else b[24 * p + 8 + 2 * n:24 * p + 10 + 2 * n]
            return [(lambda p=p, n=n: fn(p, n), dest(p, n)) for p in range(2) for n in range(8)]
        acc = self.ksplit_gemm(self.w2, 12, load_tt, RED_D, 0)
        self.stamp("ffn2 gemm")
        self.add_packed(acc, self.hb)
        t = acc[0]
        st = self.s_tmp
        k.e("v_mul_u32_u24 %s, 1280, %s\nv_mad_u32_u24 %s, %s, 40, %s", t, self.v_s, t, self.v_g, t)
        k.e("s_lshl_b32 %s, %s, 2\ns_add_u32 %s, %s, %s\ns_mul_i32 %s, %s, 20480\ns_mul_i32 %s, %s, 160\ns_add_u32 %s, %s, %s",
            st, self.s_G, st, st, self.s_wv, st, st, self.s_tmp2, self.s_c, st, st, self.s_tmp2)
        hb = self.hb
        k.e("buffer_store_dwordx4 %s, %s, %s, %s offen", hb[0:4], t, self.OUT, st)
        k.e("buffer_store_dwordx4 %s, %s, %s, %s offen offset:16", hb[4:8], t, self.OUT, st)
        k.e("buffer_store_dwordx2 %s, %s, %s, %s offen offset:32", hb[8:10], t, self.OUT, st)
        k.release(acc, sb)
        lab = k.label("L_ep")
        k.e("s_or_b32 %s, s2, %s\ns_cmp_lg_u32 %s, 0\ns_cbranch_scc1 %s\ns_mov_b32 %s, 0x%x", st, self.s_wv, st, lab, st, EPOCH_OFF)
        k.cond_begin()
        self.set_flag(st, False)
        k.cond_end()
        k.put(lab)

    def build(self):
        k = self.k
        self.prologue()
        self.phase_a()
        self.attn_out()
        extra = [k.v(4) for _ in range(21)]
        rest = [k.a(4, at=196 + 4 * i) for i in range(15)] + extra
        self.queue_frags(self.s_w1, rest, 24)
        self.w1 += rest
        s_w2 = self.stream_base(W2_OFF, 60)
        self.phase_b()
        self.w2 = self.wo + self.w1[:35]
        self.queue_frags(s_w2, self.w2[:25], 0)

        def refill(ks):
            lo, hi = 3 * ks, min(3 * ks + 3, 35)
            if lo < hi:
                self.queue_frags(s_w2, self.w2[25 + lo:25 + hi], 25 + lo)
        self.phase_c(refill)
        k.release(*extra)
        self.phase_d()
        if self.stamps:
            k.drain_vm()
            self.stamp("end")
            st = self.s_tmp
            k.e("s_lshl_b32 %s, s2, 2\ns_add_u32 %s, %s, %s\ns_lshl_b32 %s, %s, 8\ns_add_u32 %s, %s, 0x%x", st, st, st, self.s_wv, st, st, st, st, STAMP_OFF)
            k.e("buffer_store_dword %s, %s, %s, %s offen", self.v_stamp, self.v_l4, self.WS, st)
        k.put("L_end")
        k.e("s_endpgm")
        return HEAD + k.text() + TAIL


if __name__ == "__main__":
    out = sys.argv[1] if len(sys.argv) > 1 else "cdna_kernels/%s.s" % NAME
    g = Gen()
    open(out, "w").write(g.build())
    print("written", out, "instructions", len(g.k.ins), "hi", g.k.hi)
```

```python
import sys
from emit import K, R

NAME = "sequential_preLN__linear_kernel_hedgehog__dense_activation_relu__prompt"

WO_OFF, W1_OFF, W2_OFF, WQ_OFF = 0x0, 0x100000, 0x300000, 0x500000
KVP_OFF, KVF_OFF, HS_OFF = 0x600000, 0xC00000, 0xC20000
KVH = 1792
FLAG_OFF = 0xC40000
READY_OFF, EPOCH_OFF = 0xC44000, 0xC48000
O_OFF, H_OFF, F_OFF = 0xD00000, 0x1000000, 0x1300000
STAMP_OFF, DUMP_OFF = 0x1A00000, 0x2000000
WS_BYTES = 0x1900000
FAR = 0x40000000

SLOT = [81920, 102400, 0, 20480, 122880, 143360]
XS = 0
RLS = 122880
TR, TRP = 40960, 544
ZERO, WPH = 75776, 77824
KVS = 20480
KVL, ZERO2 = 143360, 151552
RED = 81920
PARK = 0
HL = 81920
LDS_BYTES = 163840
MAT = [1280, 2560]
SPIN = 1 << 18

HEAD = """; Fused pre-LN hedgehog linear attention + ReLU FFN, one persistent launch.
; 256 workgroups: 32 row blocks of 64 tokens x 8 column slices (4 heads / 80 / 192 columns).
; @launch grid=(256,1,1) block=(256,1,1) lds=%d
.amdgcn_target "amdgcn-amd-amdhsa--gfx950"
.text
.globl %s_kernel
.p2align 8
.type %s_kernel,@function
%s_kernel:
""" % (LDS_BYTES, NAME, NAME, NAME)

TAIL = """
.section .rodata,"a"
.p2align 6
.amdhsa_kernel %s_kernel
  .amdhsa_next_free_vgpr 512
  .amdhsa_next_free_sgpr 102
  .amdhsa_accum_offset 256
  .amdhsa_group_segment_fixed_size 0
  .amdhsa_kernarg_size 80
  .amdhsa_user_sgpr_count 2
  .amdhsa_user_sgpr_kernarg_segment_ptr 1
  .amdhsa_system_sgpr_workgroup_id_x 1
.end_amdhsa_kernel
""" % NAME


class Gen:
    def __init__(self, stamps=False, dumps=(), force_slow=False, only=None, **opt):
        self.k = K()
        self.only = only
        self.o = dict(codepf=1, wpf=1, touch=0, rot=3, xnt=0, rlnt=1, q0=8, q1=8, q2=9, q3=91, q4=91, ic_at=8, wo_at=12, nq_at=12, k_pre=0, s1_at=12, s1_use=15, fin_at=17,
                      pre_o=8, pre_h=10, pre_f=5, fine=0, top=10, norl=0, noclear=0, look=2,
                      n_q=10, n_phq=18, n_att=10, n_b=24, n_c=44, stop_c=16, tch_at=10, probe=0, hyb=7, tnt=0,
                      wpf_at=1, k_delay=500, init_at=2, n_v=0, k_early=10, dup=0, meas=0,
                      cs_early=20, ntail=2, outfl=0, n_att2=6, tmask=7, cyc=0, pre=0, st_delay=400, krot=1, il_at=6)
        assert set(opt) <= set(self.o), opt
        self.o.update(opt)
        self.stamps, self.dumps, self.force_slow = stamps, set(dumps), force_slow
        self.stamp_names = []
        self.log = []
        self.dump_info = {}

    def mfma(self, d, a, b, c=None):
        self.k.e("v_mfma_f32_16x16x32_bf16 %s, %s, %s, %s", d, a, b, d if c is None else c)

    def srd(self, dst, ptr, nbytes):
        self.k.e("s_mov_b32 %s, %s\ns_mov_b32 %s, %s\ns_mov_b32 %s, 0x%x\ns_mov_b32 %s, 0x20000",
                 dst[0], ptr[0], dst[1], ptr[1], dst[2], nbytes, dst[3])

    def stamp(self, name):
        self.log.append((name, self.k.clock, len(self.k.bg), self.k.vm.next))
        if not self.stamps or (self.only and name not in self.only):
            return
        k = self.k
        k.e("s_memtime %s" if self.o["cyc"] else "s_memrealtime %s", self.s_t)
        k.drain_ds()
        k.e("v_writelane_b32 %s, %s, %d", self.v_stamp, self.s_t[0], len(self.stamp_names))
        self.stamp_names.append(name)

    def dump(self, name, regs):
        if name not in self.dumps:
            return
        k = self.k
        idx = len(self.dump_info)
        self.dump_info[name] = (idx, regs.n)
        st, t = self.s_tmp, k.v()
        k.e("s_lshl_b32 %s, s2, 2\ns_add_u32 %s, %s, %s\ns_mul_i32 %s, %s, %d\ns_add_u32 %s, %s, 0x%x",
            st, st, st, self.s_wv, st, st, 128 * 256, st, st, DUMP_OFF + idx * 0x2000000)
        k.e("v_lshlrev_b32 %s, 2, %s", t, self.v_lane)
        for i in range(regs.n):
            k.e("buffer_store_dword %s, %s, %s, %s offen", regs[i], t, self.WS, st)
            k.e("s_add_u32 %s, %s, 256", st, st)
        k.drain_vm()
        k.release(t)

    def set_exec(self, mask):
        k = self.k
        if -1 <= mask <= 64:
            k.e("s_mov_b64 exec, %d", mask)
        else:
            k.e("s_mov_b32 exec_lo, 0x%x\ns_mov_b32 exec_hi, 0x%x", mask & 0xFFFFFFFF, mask >> 32)

    def wave_is(self, n):
        k = self.k
        lab = k.label("L_w")
        k.e("s_cmp_lg_u32 %s, %d\ns_cbranch_scc1 %s", self.s_wv, n, lab)
        k.cond_begin()
        return lab

    def close(self, lab):
        self.k.cond_end()
        self.k.put(lab)

    def shared_stores(self, fn, data=0):
        k = self.k
        if data & self.o["hyb"]:
            return fn(" sc1")
        k.e("s_cmp_lg_u32 %s, 0", self.s_fast)
        return k.either(lambda: fn(""), lambda: fn(" sc1"))

    def poll(self, voff, soff, nlanes):
        k = self.k
        lab, out = k.label("L_poll"), k.label("L_pollout")
        t = k.v()
        self.set_exec((1 << nlanes) - 1)
        k.e("s_mov_b32 %s, 0", self.s_spin)
        k.put(lab)
        k.e("buffer_load_dword %s, %s, %s, %s offen sc1", t, voff, self.WS, soff)
        k.e("s_add_u32 %s, %s, 1\ns_cmp_gt_u32 %s, %d\ns_cbranch_scc1 %s", self.s_spin, self.s_spin, self.s_spin, SPIN, out)
        k.drain_vm()
        k.e("v_cmp_ne_u32 vcc, %s, %s\ns_cbranch_vccnz %s", self.s_tag[0], t, lab)
        k.put(out)
        k.drain_vm()
        self.set_exec(-1)
        k.release(t)

    def set_flag(self, soff, local):
        k = self.k
        self.set_exec(1)
        fn = lambda fl: k.e("buffer_store_dword %s, %s, %s, %s offen%s", self.v_tag, self.v_zero, self.WS, soff, fl)
        if local:
            self.shared_stores(fn)
        else:
            fn(" sc1")
        self.set_exec(-1)

    def reduce2(self, a, b):
        k = self.k
        t = k.v()
        k.e("v_permlane32_swap_b32 %s, %s\nv_add_f32 %s, %s, %s\nv_mov_b32 %s, %s", a, b, a, a, b, t, a)
        k.e("v_permlane16_swap_b32 %s, %s\nv_add_f32 %s, %s, %s\nv_mov_b32 %s, %s", a, t, a, a, t, b, a)
        k.e("v_permlane32_swap_b32 %s, %s", a, b)
        k.release(t)

    def prologue(self):
        k = self.k
        k.s(3, at=0)
        self.X, self.WQKV, self.WS, self.DBG = (k.s(4, at=4 + 4 * i) for i in range(4))
        self.OUT, self.WPHI, self.RL = (k.s(4, at=20 + 4 * i) for i in range(3))
        self.ptr = k.s(20, at=32)
        for n in ("wv", "c", "G", "fast", "spin", "tmp", "tmp2", "m0w", "wcol", "bg", "cw", "gcw", "krot", "wcol2"):
            setattr(self, "s_" + n, k.s())
        self.s_t = k.s(2)
        self.s_L = k.s(2)
        self.s_tag = k.s(2)
        k.v(at=0)
        k.e("s_cmp_ge_u32 s2, 256\ns_cbranch_scc1 L_end")
        if self.o["meas"] or self.stamps:
            self.s_t0 = k.s(2)
            k.e("s_memtime %s" if self.o["cyc"] else "s_memrealtime %s", self.s_t0)
        k.e("s_load_dwordx16 %s, s[0:1], 0\ns_load_dwordx4 %s, s[0:1], 64", self.ptr[0:16], self.ptr[16:20])
        for n in ("lane", "g", "s", "r", "cc", "zero", "tag", "l16", "l8", "l4", "l128", "junk"):
            setattr(self, "v_" + n, k.v())
        if self.stamps:
            self.v_stamp = k.v()
            k.e("v_mov_b32 %s, 0", self.v_stamp)
        st, s2 = self.s_tmp, self.s_tmp2
        k.e("v_lshrrev_b32 %s, 6, v0\nv_and_b32 %s, 63, v0\nv_readfirstlane_b32 %s, %s",
            self.v_g, self.v_lane, self.s_wv, self.v_g)
        k.e("v_lshlrev_b32 %s, 7, %s", self.v_l128, self.v_lane)
        self.code_prefetch()
        k.e("s_bfe_u32 %s, s2, 0x30003\ns_and_b32 %s, s2, 7\ns_lshl_b32 %s, %s, 2\ns_lshr_b32 %s, s2, 6\ns_add_u32 %s, %s, %s",
            self.s_c, self.s_G, self.s_G, self.s_G, st, self.s_G, self.s_G, st)

        xd, t = k.v(), k.v()
        self.v_row8, self.v_ch8 = k.v(), k.v()
        k.e("v_lshrrev_b32 %s, 3, %s\nv_and_b32 %s, 7, %s\nv_xor_b32 %s, %s, %s", self.v_row8, self.v_lane, self.v_ch8, self.v_lane, t, self.v_row8, self.v_ch8)
        k.e("v_mul_u32_u24 %s, 1280, %s\nv_lshl_add_u32 %s, %s, 4, %s", xd, self.v_row8, xd, t, xd)
        sx, sm = k.s(4, align=1), k.s(4, align=1)
        base = k.s()
        k.e("s_mul_i32 %s, %s, 20480\ns_mul_i32 %s, %s, 81920\ns_add_u32 %s, %s, %s", st, self.s_wv, base, self.s_G, base, base, st)
        for i in range(4):
            k.e("s_and_b32 %s, %s, %d\ns_add_u32 %s, %s, %d\ns_and_b32 %s, %s, 3", s2, self.s_c, self.o["rot"], s2, s2, i, s2, s2)
            k.e("s_mul_i32 %s, %s, 5120\ns_add_u32 %s, %s, %s", sm[i], s2, sm[i], sm[i], st)
            k.e("s_bitcmp1_b32 %s, 0\ns_cselect_b32 %s, 640, 0\ns_lshr_b32 %s, %s, 1\ns_mul_i32 %s, %s, 10240", s2, sx[i], s2, s2, s2, s2)
            k.e("s_add_u32 %s, %s, %s\ns_add_u32 %s, %s, %s", sx[i], sx[i], s2, sx[i], sx[i], base)
        k.release(base)
        k.release(t)

        parts = [self.setup_consts, self.relayout_setup, self.setup_ln, self.setup_w]
        for f in parts[:self.o["pre"]]:
            f()
        k.e("s_waitcnt lgkmcnt(0)")
        p = self.ptr
        self.srd(self.X, p[0:2], 2621440)
        if self.stamps:
            k.e("v_writelane_b32 %s, %s, 0", self.v_stamp, self.s_t0[0])
            self.stamp_names.append("entry")
        self.stamp("start")
        if self.o["probe"]:
            self.probe()

        def x_dma(h):
            for i in (2 * h, 2 * h + 1):
                for n in range(5):
                    k.e("s_add_u32 m0, %s, %d", sm[i], XS + 896 * n)
                    self.t_x = k.e("buffer_load_dwordx4 %s, %s, %s offen offset:%d%s lds", xd, self.X, sx[i], 128 * n, " nt" if self.o["xnt"] else "")
        x_dma(0)
        k.e("s_add_u32 %s, %s, 0x%x\ns_addc_u32 %s, %s, 0\ns_load_dword %s, %s, 0", self.s_t[0], p[18], EPOCH_OFF, self.s_t[1], p[19], self.s_tag[0], self.s_t)
        self.srd(self.WQKV, p[2:4], 2457600)
        self.srd(self.WPHI, p[4:6], 25600)
        self.srd(self.OUT, p[14:16], 2621440)
        self.srd(self.WS, p[18:20], 0x10000000 if (self.stamps or self.dumps) else WS_BYTES)
        for f in parts[self.o["pre"]:2]:
            f()
        rl = self.RL
        k.e("s_cmp_lt_u32 s2, 216\ns_cselect_b64 %s, %s, %s\ns_cmp_lt_u32 s2, 136\ns_cselect_b64 %s, %s, %s\ns_cmp_lt_u32 s2, 40\ns_cselect_b64 %s, %s, %s",
            rl[0:2], p[10:12], p[2:4], rl[0:2], p[12:14], rl[0:2], rl[0:2], p[6:8], rl[0:2])
        k.e("s_mov_b32 %s, %s\ns_mov_b32 %s, 0x20000", rl[2], self.s_rsize, rl[3])
        k.release(self.s_rsize)
        x_dma(1)
        k.release(xd, sx, sm)
        self.stamp("x issued")
        for f in parts[max(2, self.o["pre"]):]:
            f()
        if self.o["wpf_at"] == 0:
            self.weight_prefetch()
        self.relayout_load()
        k.bg_flush(self.b_rl)
        if self.o["wpf_at"] == 1:
            self.weight_prefetch()
        k.e("buffer_load_dwordx4 %s, %s, %s, 0 offen", self.v_wphi, self.v_wpa, self.WPHI)

    def setup_consts(self):
        k = self.k
        st = self.s_tmp
        k.e("v_lshrrev_b32 %s, 4, %s\nv_and_b32 %s, 15, %s\nv_bfe_u32 %s, %s, 2, 2\nv_and_b32 %s, 3, %s",
            self.v_g, self.v_lane, self.v_s, self.v_lane, self.v_r, self.v_lane, self.v_cc, self.v_lane)
        k.e("v_mov_b32 %s, 0", self.v_zero)
        k.e("v_lshlrev_b32 %s, 4, %s\nv_lshlrev_b32 %s, 3, %s\nv_lshlrev_b32 %s, 2, %s",
            self.v_l16, self.v_lane, self.v_l8, self.v_lane, self.v_l4, self.v_lane)
        k.e("s_mov_b32 %s, 0x3fb8aa3b\ns_mov_b32 %s, 0x3fb8aa3b", self.s_L[0], self.s_L[1])
        k.e("s_mul_i32 %s, %s, 5120", self.s_m0w, self.s_wv)
        k.e("s_lshl_b32 %s, %s, 2\ns_add_u32 %s, %s, %s\ns_lshl_b32 %s, %s, 5\ns_add_u32 %s, %s, %s",
            self.s_cw, self.s_c, self.s_cw, self.s_cw, self.s_wv, self.s_gcw, self.s_G, self.s_gcw, self.s_gcw, self.s_cw)
        self.v_wphi = k.v(4)
        self.v_wpa = k.v()
        k.e("v_lshlrev_b32 %s, 4, v0\ns_mul_i32 %s, %s, 3200\nv_add_u32 %s, %s, %s", self.v_wpa, st, self.s_c, self.v_wpa, st, self.v_wpa)
        k.e("v_cmp_gt_u32 vcc, 200, v0\nv_mov_b32 %s, 0x%x\nv_cndmask_b32 %s, %s, %s, vcc", self.v_wphi[0], FAR, self.v_wpa, self.v_wphi[0], self.v_wpa)

    def setup_ln(self):
        k = self.k
        st = self.s_tmp
        self.v_xa, self.v_ra = k.v(4, align=1), k.v(5, align=1)
        ad, t, u, w = self.v_xa, k.v(), k.v(), k.v()
        k.e("s_mul_i32 %s, %s, 20480\nv_lshrrev_b32 %s, 3, %s\nv_mul_u32_u24 %s, 10240, %s\nv_and_b32 %s, 7, %s", st, self.s_wv, u, self.v_s, u, u, w, self.v_s)
        k.e("v_lshl_add_u32 %s, %s, 7, %s\nv_add_u32 %s, %s, %s\nv_xor_b32 %s, %s, %s", u, w, u, u, st, u, t, self.v_g, w)
        k.e("v_lshl_add_u32 %s, %s, 4, %s\nv_xor_b32 %s, 64, %s\nv_lshlrev_b32 %s, 4, %s", ad[0], t, u, ad[1], ad[0], w, w)
        k.e("s_and_b32 %s, %s, %d\ns_mul_i32 %s, %s, 6144\ns_mul_i32 %s, %s, -4096", self.s_krot, self.s_G, self.o["krot"], st, self.s_krot, self.s_tmp2, self.s_krot)
        k.e("v_add_u32 %s, %s, %s\nv_add_u32 %s, %s, %s", ad[2], self.s_tmp2, ad[0], ad[3], self.s_tmp2, ad[1])
        k.e("v_add_u32 %s, %s, %s\nv_add_u32 %s, %s, %s", ad[0], st, ad[0], ad[1], st, ad[1])
        k.e("s_mul_i32 %s, %s, 160", st, self.s_c)
        for i in range(5):
            d = self.v_ra[i]
            k.e("v_mad_u32_u24 %s, %s, 40, %s\nv_add_u32 %s, %d, %s\nv_lshrrev_b32 %s, 7, %s", t, self.v_g, st, t, 8 * i, t, d, t)
            k.e("v_mul_u32_u24 %s, 896, %s\nv_xor_b32 %s, %s, %s\nv_add3_u32 %s, %s, %s, %s", d, d, t, t, w, d, d, t, u)
        k.release(t, u, w)

    def setup_w(self):
        k = self.k
        st = self.s_tmp
        k.e("s_mul_i32 %s, %s, 122880\ns_mul_i32 %s, %s, 160\ns_add_u32 %s, %s, %s",
            self.s_wcol, self.s_wv, st, self.s_c, self.s_wcol, self.s_wcol, st)
        k.e("s_mul_i32 %s, %s, %d\ns_add_u32 %s, %s, %s\ns_mul_i32 %s, %s, %d\ns_add_u32 %s, %s, %s",
            st, self.s_krot, -2 * 491520, self.s_wcol2, self.s_wcol, st, st, self.s_krot, 3 * 491520, self.s_wcol, self.s_wcol, st)
        self.v_wd = k.v(5, align=1)
        t, u, w = k.v(), k.v(), k.v()
        for n in range(5):
            d = self.v_wd[n]
            k.e("v_add_u32 %s, %d, %s\nv_mul_u32_u24 %s, 6554, %s\nv_lshrrev_b32 %s, 16, %s", t, 64 * n, self.v_lane, u, t, u, u)
            k.e("v_mul_u32_u24 %s, 10, %s\nv_sub_u32 %s, %s, %s", d, u, t, t, d)
            k.e("v_and_b32 %s, 0x13, %s\nv_bfe_u32 %s, %s, 2, 1\nv_lshl_or_b32 %s, %s, 3, %s", d, u, w, u, d, w, d)
            k.e("v_bfe_u32 %s, %s, 3, 1\nv_lshl_or_b32 %s, %s, 2, %s", w, u, d, w, d)
            k.e("v_mul_u32_u24 %s, 3840, %s\nv_lshl_add_u32 %s, %s, 4, %s", d, d, d, t, d)
        k.release(u, w)
        self.kv_addresses()
        self.v_wr, self.v_qr = k.v(3, align=1), k.v(3, align=1)
        k.e("v_lshrrev_b32 %s, 1, %s\nv_lshl_add_u32 %s, %s, 4, %s\nv_and_b32 %s, 1, %s\nv_lshl_add_u32 %s, %s, 2, %s",
            t, self.v_g, self.v_wr[0], t, self.v_r, t, self.v_g, t, t, self.v_wr[0])
        self.v_tok = k.v()
        k.e("v_mov_b32 %s, %s\nv_mul_u32_u24 %s, 160, %s\nv_mad_u32_u24 %s, %s, 40, %s", self.v_tok, t, t, t, self.v_wr[0], self.v_cc, t)
        k.e("v_add_u32 %s, 0x10000, %s\nv_add_u32 %s, 0x20000, %s", self.v_wr[1], self.v_wr[0], self.v_wr[2], self.v_wr[0])
        k.e("v_mov_b32 %s, %s\nv_add_u32 %s, 0x10000, %s\nv_add_u32 %s, 0x20000, %s",
            self.v_qr[0], self.v_l16, self.v_qr[1], self.v_l16, self.v_qr[2], self.v_l16)
        self.s_wq = k.s()
        k.e("s_mul_i32 %s, %s, 102400\ns_add_u32 %s, %s, %s\ns_add_u32 %s, %s, 0x%x",
            self.s_wq, self.s_c, self.s_wq, self.s_wq, self.s_m0w, self.s_wq, self.s_wq, WQ_OFF)
        self.s_wq2 = k.s()
        k.e("s_mul_i32 %s, %s, %d\ns_add_u32 %s, %s, %s\ns_mul_i32 %s, %s, %d\ns_add_u32 %s, %s, %s",
            st, self.s_krot, -2 * 20480, self.s_wq2, self.s_wq, st, st, self.s_krot, 3 * 20480, self.s_wq, self.s_wq, st)
        k.release(t)

    def probe(self):
        k = self.k
        which = self.o["probe"]
        ptr, off = {1: (18, 0xD00000), 2: (18, 0xFF00000), 3: (0, 0x200000), 4: (12, 0x100000), 5: (14, 0x100000), 6: (18, 0x8000000), 7: (18, 0xD00000),
                    8: (2, 0x100000), 9: (18, 0x2800000), 10: (0, 0x100000), 11: (10, 0x100000), 12: (18, 0x1800000), 13: (18, 0x100000)}[which]
        lab, loop = k.label("L_pr"), k.label("L_pr")
        d, t2 = self.DBG, k.s(2)
        quiet = k.label("L_pr")
        k.e("s_cmp_eq_u32 s2, 100\ns_cbranch_scc1 %s\ns_sleep 127\ns_sleep 127\ns_branch %s", quiet, lab)
        k.put(quiet)
        k.cond_begin()
        self.srd(d, self.ptr[ptr:ptr + 2], 0x10000000 if ptr == 18 else 0x1D0000 + (0x80000 if ptr not in (10, 12) else 0))
        k.drain_vm()
        k.e("v_mov_b32 %s, 0x%x\ns_memtime %s\ns_waitcnt lgkmcnt(0)", self.v_zero, off, self.s_t)
        for i in range(0 if which == 7 else 24):
            k.e("buffer_load_dword %s, %s, %s, 0 offen", self.v_junk, self.v_zero, d)
            k.drain_vm()
            k.e("v_add_u32 %s, %d, %s", self.v_zero, 0x8480, self.v_zero)
        k.e("s_memtime %s\ns_waitcnt lgkmcnt(0)\ns_sub_u32 %s, %s, %s\ns_mul_i32 %s, %s, %d", t2, self.s_t[0], t2[0], self.s_t[0], self.s_t[0], self.s_t[0], 1)
        k.e("s_mov_b32 %s, %s", self.s_t[1], t2[0])
        k.put(loop)
        k.e("s_memtime %s\ns_waitcnt lgkmcnt(0)\ns_sub_u32 %s, %s, %s\ns_cmp_lt_u32 %s, %s\ns_cbranch_scc1 %s", t2, t2[0], t2[0], self.s_t[1], t2[0], self.s_t[0], loop)
        k.cond_end()
        k.put(lab)
        k.release(t2)

    def measure(self):
        k = self.k
        x, lo, hi, loop = k.v(4), k.s(), k.s(), k.label("L_ms")
        st, t = self.s_tmp, self.s_t
        k.e("s_mov_b32 %s, 0x%x", st, READY_OFF + 0x1000)
        k.e("buffer_load_dwordx4 %s, %s, %s, %s offen sc1", x, self.v_l16, self.WS, st)
        for i in range(4):
            k.e("v_subrev_u32 %s, %s, %s", x[i], self.s_t0[0], x[i])
        k.e("s_mov_b32 %s, 0\ns_mov_b32 %s, 0", lo, hi)
        for i in range(4):
            for l in range(64):
                k.e("v_readlane_b32 %s, %s, %d\ns_min_i32 %s, %s, %s\ns_max_i32 %s, %s, %s", st, x[i], l, lo, lo, st, hi, hi, st)
        k.e("s_memrealtime %s\ns_waitcnt lgkmcnt(0)", t)
        m = self.o["meas"]
        if m == 1:
            k.e("s_sub_u32 %s, %s, %s\ns_sub_u32 %s, %s, %s", hi, t[0], self.s_t0[0], hi, hi, lo)
        elif m == 2:
            k.e("s_sub_u32 %s, %s, %s\ns_mul_i32 %s, %s, 4", hi, hi, lo, hi, hi)
        else:
            k.e("s_mov_b32 %s, 0", hi)
        k.e("s_mov_b32 %s, %s", lo, t[0])
        k.put(loop)
        k.e("s_memrealtime %s\ns_waitcnt lgkmcnt(0)\ns_sub_u32 %s, %s, %s\ns_cmp_lt_u32 %s, %s\ns_cbranch_scc1 %s", t, st, t[0], lo, st, hi, loop)
        k.release(x, lo, hi)

    def kv_addresses(self):
        k = self.k
        st, s2 = self.s_tmp, self.s_tmp2
        self.s_kvp, self.s_kvrow, self.s_kvf = k.s(), k.s(), k.s()
        self.v_hi41, self.v_lo5 = k.v(), k.v()
        t = k.v()
        k.e("v_mov_b32 %s, 0x%x\nv_cmp_gt_u32 vcc, 41, %s\nv_cndmask_b32 %s, %s, %s, vcc", t, FAR, self.v_lane, self.v_hi41, t, self.v_l16)
        k.e("v_cmp_gt_u32 vcc, 5, %s\nv_cndmask_b32 %s, %s, %s, vcc", self.v_lane, self.v_lo5, t, self.v_l16)
        k.release(t)
        k.e("s_lshl_b32 %s, %s, 5\ns_add_u32 %s, %s, %s\ns_lshl_b32 %s, %s, 2\ns_add_u32 %s, %s, %s\ns_mul_i32 %s, %s, %d\ns_add_u32 %s, %s, 0x%x",
            st, self.s_c, st, st, self.s_G, st, st, st, st, self.s_wv, st, st, KVH, self.s_kvp, st, KVP_OFF)
        k.e("s_and_b32 %s, %s, 7\ns_mul_i32 %s, %s, 3\ns_add_u32 %s, %s, %s\ns_mul_i32 %s, %s, 80", st, self.s_G, st, st, st, st, self.s_wv, s2, st)
        k.e("s_cmp_ge_u32 %s, 21\ns_cselect_b32 %s, 0x%x, %s\ns_cmp_eq_u32 %s, 3\ns_cselect_b32 %s, 0x%x, %s", st, s2, FAR, s2, self.s_wv, s2, FAR, s2)
        k.e("s_lshr_b32 %s, %s, 3\ns_mul_i32 %s, %s, %d\ns_add_u32 %s, %s, %s", st, self.s_G, st, st, KVH, self.s_kvrow, st, s2)
        k.e("s_mul_i32 %s, %s, %d\ns_add_u32 %s, %s, %s\ns_add_u32 %s, %s, 0x%x", st, self.s_c, 4 * KVH, st, st, self.s_kvrow, self.s_kvf, st, KVF_OFF)

    def clears(self):
        k = self.k
        st = self.s_tmp
        self.s_oflag = k.s()
        k.e("s_mul_i32 %s, %s, 384\ns_lshl_b32 %s, %s, 2\ns_add_u32 %s, %s, %s\ns_add_u32 %s, %s, 0x%x",
            st, self.s_G, self.s_oflag, self.s_cw, st, st, self.s_oflag, self.s_oflag, st, FLAG_OFF)
        p = self.v_poison = k.v(4)
        for i in range(4):
            k.e("v_mov_b32 %s, -1", p[i])
        k.bg_push(lambda: k.e("buffer_store_dwordx4 %s, %s, %s, %s offen sc1", p, self.v_l16, self.WS, self.s_kvp), 100)
        k.bg_push(lambda: k.e("buffer_store_dwordx4 %s, %s, %s, %s offen offset:1024 sc1", p, self.v_hi41, self.WS, self.s_kvp), 100)
        self.b_st = k.bg_push(lambda: k.e("buffer_store_dwordx4 %s, %s, %s, %s offen sc1", p, self.v_lo5, self.WS, self.s_kvf), 100)

        def touch():
            self.set_exec(7)
            t = k.e("buffer_load_dword %s, %s, %s, %s offen sc1", self.v_junk, self.v_l128, self.WS, self.s_oflag)
            k.vm.q[-1][2] = set()
            self.set_exec(-1)
            return t
        k.bg_push(touch, 50)

    def code_prefetch(self):
        k = self.k
        if not self.o["codepf"]:
            return
        st, code, t = self.s_tmp, self.RL, self.v_junk
        k.e("s_getpc_b64 %s\ns_and_b32 %s, %s, 0xffffff80\ns_mov_b32 %s, L_end-L_pc+256\ns_mov_b32 %s, 0x20000", code[0:2], code[0], code[0], code[2], code[3])
        k.put("L_pc")
        k.e("s_lshr_b32 %s, s2, 3\ns_lshl_b32 %s, %s, 2\ns_add_u32 %s, %s, %s\ns_lshl_b32 %s, %s, 7", st, st, st, st, st, self.s_wv, st, st)
        k.e("v_lshlrev_b32 %s, 14, %s", t, self.v_lane)
        self.set_exec(7)
        k.e("buffer_load_dword %s, %s, %s, %s offen", self.v_junk, t, code, st)
        k.vm.q[-1][2] = set()
        self.set_exec(-1)

    def weight_prefetch(self):
        k = self.k
        if not self.o["wpf"]:
            return
        st, t = self.s_tmp, k.v()
        k.e("s_lshl_b32 %s, s2, 2\ns_add_u32 %s, %s, %s\ns_mul_i32 %s, %s, 25\ns_lshr_b32 %s, %s, 1", st, st, st, self.s_wv, st, st, st, st)
        k.e("v_add_u32 %s, %s, %s\nv_mul_u32_u24 %s, 52429, %s\nv_lshrrev_b32 %s, 20, %s", t, st, self.v_lane, self.v_junk, t, self.v_junk, self.v_junk)
        k.e("v_mul_u32_u24 %s, 1280, %s\nv_lshl_add_u32 %s, %s, 7, %s", self.v_junk, self.v_junk, t, t, self.v_junk)
        self.set_exec((1 << 13) - 1)
        k.e("buffer_load_dword %s, %s, %s, 0 offen offset:1280", self.v_junk, t, self.WQKV)
        k.vm.q[-1][2] = set()
        self.set_exec(-1)
        k.release(t)

    def touch_lines(self, base, per_wave_lines):
        k = self.k
        if not self.o["touch"]:
            return
        st = self.s_tmp
        k.e("s_mul_i32 %s, %s, %d\ns_add_u32 %s, %s, 0x%x", st, self.s_gcw, per_wave_lines * 128, st, st, base)
        self.set_exec((1 << per_wave_lines) - 1)
        k.e("buffer_load_dword %s, %s, %s, %s offen%s", self.v_junk, self.v_l128, self.WS, st, " nt" if self.o["tnt"] else " sc1")
        k.vm.q[-1][2] = set()
        self.set_exec(-1)

    def relayout_setup(self):
        k = self.k
        for n in ("cpr", "size", "pitch", "b0", "dl", "col", "dst", "big", "tst", "wst"):
            setattr(self, "s_r" + n, k.s())
        u, a, b, c2 = "s2", self.s_tmp, self.s_tmp2, k.s()
        hf = k.s()
        l_w2, l_w1, l_oh, l_go, l_wq = (k.label("L_rl") for _ in range(5))
        k.e("s_cmp_ge_u32 %s, 216\ns_cbranch_scc1 %s", u, l_wq)
        k.e("s_cmp_ge_u32 %s, 136\ns_cbranch_scc1 %s\ns_cmp_ge_u32 %s, 40\ns_cbranch_scc1 %s", u, l_w1, u, l_w2)
        p = self.ptr

        def five_wide():
            k.e("s_mov_b32 %s, 40\ns_mov_b32 %s, 1280\ns_mul_i32 %s, %s, 640\ns_mov_b32 %s, 3072",
                self.s_rcpr, self.s_rpitch, self.s_rcol, hf, self.s_rbig)
            k.e("s_mov_b32 %s, 8\ns_mov_b32 %s, 160", self.s_rtst, self.s_rwst)

        k.e("s_mov_b32 %s, 819200", self.s_rsize)
        k.e("s_mul_i32 %s, %s, 205\ns_lshr_b32 %s, %s, 11\ns_mul_i32 %s, %s, 10\ns_sub_u32 %s, %s, %s",
            a, u, a, a, b, a, b, u, b)
        k.e("s_and_b32 %s, %s, 1\ns_lshr_b32 %s, %s, 1", hf, b, b, b)
        five_wide()
        k.e("s_lshl_b32 %s, %s, 2\ns_add_u32 %s, %s, %s\ns_lshl_b32 %s, %s, 2\ns_add_u32 %s, %s, %s",
            c2, hf, c2, c2, self.s_wv, c2, c2, c2, c2, a)
        k.e("s_mul_i32 %s, %s, 5\ns_add_u32 %s, %s, %s\ns_mul_i32 %s, %s, 5120\ns_add_u32 %s, %s, 0x%x",
            c2, c2, c2, c2, b, c2, c2, self.s_rdst, c2, WO_OFF)
        k.e("s_branch %s", l_oh)

        k.put(l_w2)
        k.e("s_mov_b32 %s, 1966080", self.s_rsize)
        k.e("s_sub_u32 %s, %s, 40\ns_mul_i32 %s, %s, 171\ns_lshr_b32 %s, %s, 12\ns_mul_i32 %s, %s, 24\ns_sub_u32 %s, %s, %s",
            c2, u, a, c2, a, a, b, a, b, c2, b)
        k.e("s_and_b32 %s, %s, 1\ns_lshr_b32 %s, %s, 1", hf, b, b, b)
        five_wide()
        k.e("s_lshl_b32 %s, %s, 2\ns_add_u32 %s, %s, %s\ns_lshl_b32 %s, %s, 2\ns_add_u32 %s, %s, %s",
            c2, hf, c2, c2, self.s_wv, c2, c2, c2, c2, a)
        k.e("s_mul_i32 %s, %s, 12\ns_add_u32 %s, %s, %s\ns_mul_i32 %s, %s, 5120\ns_add_u32 %s, %s, 0x%x",
            c2, c2, c2, c2, b, c2, c2, self.s_rdst, c2, W2_OFF)
        k.e("s_lshl_b32 %s, %s, 1\ns_cmp_ge_u32 %s, 6\ns_cselect_b32 %s, 6, 0\ns_addc_u32 %s, %s, 0\ns_sub_u32 %s, %s, %s",
            a, a, b, c2, a, a, b, b, c2)
        k.e("s_mul_i32 %s, %s, 192\ns_mul_i32 %s, %s, 48\ns_mul_i32 %s, %s, 96\ns_sub_u32 %s, %s, 352",
            a, a, c2, b, hf, b, hf, hf)
        k.e("s_cmp_ge_u32 %s, 4\ns_cselect_b32 %s, %s, %s\ns_cselect_b32 %s, 48, 16\ns_add_u32 %s, %s, %s",
            b, c2, hf, c2, self.s_rdl, a, a, c2)
        k.e("s_lshl_b32 %s, %s, 2\ns_add_u32 %s, %s, %s\ns_branch %s", c2, self.s_wv, self.s_rb0, a, c2, l_go)

        k.put(l_wq)
        k.e("s_mov_b32 %s, 2457600", self.s_rsize)
        k.e("s_sub_u32 %s, %s, 216\ns_and_b32 %s, %s, 1\ns_lshr_b32 %s, %s, 1", b, u, hf, b, b, b)
        five_wide()
        k.e("s_mov_b32 %s, 3840\ns_mov_b32 %s, 4", self.s_rpitch, self.s_rdl)
        k.e("s_lshl_b32 %s, %s, 2\ns_add_u32 %s, %s, %s\ns_mul_i32 %s, %s, 20\ns_add_u32 %s, %s, %s", c2, hf, c2, c2, self.s_wv, c2, c2, c2, c2, b)
        k.e("s_mul_i32 %s, %s, 5120\ns_add_u32 %s, %s, 0x%x", c2, c2, self.s_rdst, c2, WQ_OFF)
        k.e("s_lshl_b32 %s, %s, 2\ns_add_u32 %s, %s, %s\ns_lshl_b32 %s, %s, 3\ns_branch %s", b, b, b, b, self.s_wv, self.s_rb0, b, l_go)

        k.put(l_w1)
        k.e("s_mov_b32 %s, 1966080", self.s_rsize)
        k.e("s_sub_u32 %s, %s, 136\ns_and_b32 %s, %s, 3\ns_lshr_b32 %s, %s, 2", c2, u, hf, c2, c2, c2)
        k.e("s_mov_b32 %s, 8\ns_mov_b32 %s, 3072\ns_mul_i32 %s, %s, 768\ns_mov_b32 %s, 61440",
            self.s_rcpr, self.s_rpitch, self.s_rcol, hf, self.s_rbig)
        k.e("s_mov_b32 %s, 32\ns_mov_b32 %s, 192", self.s_rtst, self.s_rwst)
        k.e("s_lshl_b32 %s, %s, 2\ns_add_u32 %s, %s, %s\ns_mul_i32 %s, %s, 40\ns_add_u32 %s, %s, %s",
            hf, hf, hf, hf, self.s_wv, hf, hf, hf, hf, c2)
        k.e("s_mul_i32 %s, %s, 3072\ns_add_u32 %s, %s, 0x%x", hf, hf, self.s_rdst, hf, W1_OFF)
        k.e("s_mul_i32 %s, %s, 205\ns_lshr_b32 %s, %s, 10\ns_mul_i32 %s, %s, 5\ns_sub_u32 %s, %s, %s",
            a, c2, a, a, b, a, b, c2, b)

        k.put(l_oh)
        k.e("s_mul_i32 %s, %s, 160\ns_lshl_b32 %s, %s, 3\ns_add_u32 %s, %s, %s", a, a, c2, b, a, a, c2)
        k.e("s_cmp_ge_u32 %s, 3\ns_cselect_b32 %s, 56, 0\ns_add_u32 %s, %s, %s", b, c2, a, a, c2)
        k.e("s_cmp_eq_u32 %s, 2\ns_cselect_b32 %s, 80, 4", b, self.s_rdl)
        k.e("s_mul_i32 %s, %s, 20\ns_add_u32 %s, %s, %s", c2, self.s_wv, self.s_rb0, a, c2)

        k.put(l_go)
        t, u = k.v(), k.v()
        self.v_rl = k.v()
        k.e("v_lshrrev_b32 %s, 2, %s\nv_and_b32 %s, 3, %s\nv_mad_u32_u24 %s, %s, %s, %s\nv_add_u32 %s, %s, %s",
            t, self.v_row8, u, self.v_row8, t, t, self.s_rdl, u, t, self.s_rb0, t)
        k.e("v_mul_u32_u24 %s, %s, %s\nv_lshl_add_u32 %s, %s, 4, %s", t, self.s_rpitch, t, self.v_rl, self.v_ch8, t)
        self.s_rcol6, self.s_rm0 = self.s_rb0, self.s_rpitch
        k.e("s_cmp_eq_u32 %s, 40\ns_cselect_b32 %s, 0x%x, %s", self.s_rcpr, self.s_rcol6, FAR, self.s_rcol)
        k.e("s_mul_i32 %s, %s, 6144\ns_add_u32 %s, %s, %d", self.s_rm0, self.s_wv, self.s_rm0, self.s_rm0, RLS)
        self.v_rt = k.v(6, align=1)
        k.e("s_mul_i32 %s, %s, %s\nv_mul_u32_u24 %s, %s, %s\nv_add_u32 %s, %s, %s", a, self.s_rwst, self.s_wv, t, self.s_rcpr, self.v_cc, t, a, t)
        k.e("v_mul_u32_u24 %s, 6144, %s\nv_lshl_add_u32 %s, %s, 7, %s\nv_add_u32 %s, %d, %s", u, self.v_g, u, self.v_r, u, u, RLS, u)
        for n in range(6):
            d = self.v_rt[n]
            k.e("v_lshrrev_b32 %s, 7, %s\nv_mul_u32_u24 %s, 896, %s\nv_add3_u32 %s, %s, %s, %s", d, t, d, d, d, d, t, u)
            if n < 5:
                k.e("v_add_u32 %s, %s, %s", t, self.s_rtst, t)
        self.s_rdst3, self.s_rdst5 = self.s_rbig, self.s_rtst
        k.e("s_add_u32 %s, %s, %s\ns_cmp_eq_u32 %s, 40\ns_cselect_b32 %s, 0x%x, %s",
            self.s_rdst3, self.s_rdst, self.s_rbig, self.s_rcpr, self.s_rdst5, FAR, self.s_rdst3)
        k.release(t, u, c2, hf, self.s_rdl, self.s_rcpr, self.s_rwst, self.v_row8, self.v_ch8)

    def relayout_load(self):
        k = self.k

        def piece(n):
            k.e("s_add_u32 m0, %s, %d", self.s_rm0, 896 * n)
            return k.e("buffer_load_dwordx4 %s, %s, %s offen offset:%d%s lds", self.v_rl, self.RL, self.s_rcol if n < 5 else self.s_rcol6,
                       128 * n, " nt" if self.o["rlnt"] else "")
        for n in range(6):
            self.b_rl = k.bg_push(lambda n=n: piece(n), 110)

    def relayout_store(self):
        k = self.k
        k.release(self.v_rl, self.s_rcol, self.s_rcol6, self.s_rm0)
        fr = self.v_rf = k.v(24)
        for n in range(6):
            k.e("ds_read_b64_tr_b16 %s, %s\nds_read_b64_tr_b16 %s, %s offset:512", fr[4 * n:4 * n + 2], self.v_rt[n], fr[4 * n + 2:4 * n + 4], self.v_rt[n])
        k.release(self.v_rt)
        for n in range(6):
            k.bg_push(lambda n=n: k.e("buffer_store_dwordx4 %s, %s, %s, %s offen offset:%d sc1", fr[4 * n:4 * n + 4], self.v_l16, self.WS,
                                      self.s_rdst if n < 3 else (self.s_rdst3 if n < 5 else self.s_rdst5), 1024 * (n % 3)), 100)

    def w_dma(self, n, now=True):
        k = self.k
        if n > 14 or n in self.b_w:
            return
        sb = self.s_bg

        def piece(i):
            if n < 10:
                if i == 0:
                    k.e("s_add_u32 %s, %s, %d", sb, self.s_wcol if n % 5 < 2 else self.s_wcol2, MAT[n // 5] + (n % 5) * 4 * 122880)
                k.e("s_add_u32 m0, %s, %d", self.s_m0w, SLOT[n % 6] + 1024 * i)
                return k.e("buffer_load_dwordx4 %s, %s, %s offen lds", self.v_wd[i], self.WQKV, sb)
            if i == 0:
                k.e("s_add_u32 %s, %s, %d\ns_add_u32 m0, %s, %d", sb, self.s_wq if n < 12 else self.s_wq2, 20480 * (n - 10), self.s_m0w, SLOT[n % 6])
            if i == 4:
                k.e("s_add_u32 %s, %s, 4096\ns_add_u32 m0, %s, %d", sb, sb, self.s_m0w, SLOT[n % 6] + 4096)
            return k.e("buffer_load_dwordx4 %s, %s, %s offen offset:%d sc1 lds", self.v_l16, self.WS, sb, 1024 * (i % 4))
        for i in range(5):
            self.b_w[n] = k.bg_push(lambda i=i: piece(i), 160 if n < 10 else 100, front=1)
        if now:
            k.bg_flush(self.b_w[n])

    def ln1(self):
        k = self.k
        self.xf = xf = k.v(80)
        self.xr = k.v(10)
        ad, ra = self.v_xa, self.v_ra
        st = self.s_tmp
        k.e("s_waitcnt lgkmcnt(0)\ns_add_u32 %s, %s, 1\nv_mov_b32 %s, %s", self.s_tag[0], self.s_tag[0], self.v_tag, self.s_tag[0])
        k.e("s_lshl_b32 %s, %s, 16\ns_lshr_b32 %s, %s, 16\ns_or_b32 %s, %s, %s\ns_andn2_b32 %s, %s, 7",
            st, self.s_tag[0], self.s_tag[1], self.s_tag[0], self.s_tag[1], self.s_tag[1], st, self.s_tag[1], self.s_tag[1])
        k.wait_vm(self.t_x)
        self.stamp("x landed")
        for j in range(20):
            k.e("ds_read_b128 %s, %s offset:%d", xf[4 * j:4 * j + 4], ad[(j & 1) + (2 if j >= 8 else 0)], XS + 1024 * (j >> 1))
        for i in range(5):
            k.e("ds_read_b64 %s, %s offset:%d", self.xr[2 * i:2 * i + 2], ra[i], XS)
        k.release(ad, ra)
        a, b, ones = k.v(), k.v(), k.v()
        k.e("v_mov_b32 %s, 0\nv_mov_b32 %s, 0\nv_mov_b32 %s, 0x3f803f80", a, b, ones)
        for i in range(80):
            k.e("v_dot2c_f32_bf16 %s, %s, %s\nv_dot2c_f32_bf16 %s, %s, %s", a, xf[i], ones, b, xf[i], xf[i])
        self.reduce2(a, b)
        if self.o["k_pre"]:
            k.bg_now(self.o["k_early"])
            self.o["k_early"] = 0
        k.wait_bg(self.b_rl)
        k.barrier()
        self.stamp("rl bar")
        late = k.bg[self.o["k_early"]:]
        del k.bg[self.o["k_early"]:]
        self.relayout_store()
        self.clears()
        k.bg += late
        k.bg_now(self.o["k_early"])
        k.spread(len(k.bg), 1300 - self.o["st_delay"], self.o["st_delay"])
        sc = k.v(2)
        self.mean_rstd(a, b, sc[0])
        k.e("v_mul_f32 %s, %s, %s\nv_sub_f32 %s, 0, %s", sc[1], a, sc[0], sc[1], sc[1])
        tp = k.v(8)
        for i in range(80):
            p = tp[2 * (i & 3):2 * (i & 3) + 2]
            k.e("v_lshlrev_b32 %s, 16, %s\nv_and_b32 %s, 0xffff0000, %s", p[0], xf[i], p[1], xf[i])
            k.e("v_pk_fma_f32 %s, %s, %s, %s op_sel:[0,0,1] op_sel_hi:[1,0,1]", p, p, sc, sc)
            k.e("v_cvt_pk_bf16_f32 %s, %s, %s", xf[i], p[0], p[1])
            k.tick()
        k.bg_now(99)
        k.release(a, b, ones, sc, tp, self.v_rf, self.v_poison, self.s_rdst, self.s_rdst3, self.s_rdst5)
        self.dump("xn", xf)

    def mean_rstd(self, a, b, rstd):
        k = self.k
        k.e("v_mul_f32 %s, 0x3acccccd, %s\nv_mul_f32 %s, 0x3acccccd, %s", a, a, b, b)
        k.e("v_fma_f32 %s, -%s, %s, %s\nv_max_f32 %s, 0, %s\nv_add_f32 %s, 0x3727c5ac, %s\nv_rsq_f32 %s, %s",
            b, a, a, b, b, b, b, b, rstd, b)

    def gemm_matrix(self, n0, acc, hook):
        k = self.k
        buf = self.abuf
        last = {}

        def reads(j, t):
            n, jj = n0 + j // 4, j % 4
            d = buf[20 * (j % 3) + 4 * t:20 * (j % 3) + 4 * t + 4]
            if n >= 10:
                o = SLOT[n % 6] + jj * 5120 + 1024 * t
                last[j] = k.e("ds_read_b128 %s, %s offset:%d", d, self.v_qr[o >> 16], o & 0xFFFF)
            else:
                for e in range(2):
                    o = SLOT[n % 6] + jj * 5120 + 8 * t + 1280 * e
                    last[j] = k.e("ds_read_b64_tr_b16 %s, %s offset:%d", d[2 * e:2 * e + 2], self.v_wr[o >> 16], o & 0xFFFF)

        def enter(n):
            k.wait_bg(self.b_w[n])
            if n == min(self.o["init_at"], 4):
                k.wait_bg(self.b_st)
            k.barrier(drain=False)
            if self.o["fine"] & 1:
                self.stamp("bar %d" % n)
            hook(n)

        enter(n0)
        for j in range(2):
            for t in range(5):
                reads(j, t)
        for j in range(20):
            if j + 2 < 20 and (j + 2) % 4 == 0:
                enter(n0 + (j + 2) // 4)
            k.wait_ds(last[j])
            for t in range(5):
                self.mfma(acc[4 * t:4 * t + 4], buf[20 * (j % 3) + 4 * t:20 * (j % 3) + 4 * t + 4],
                          self.xf[4 * j:4 * j + 4], 0 if j == 0 else None)
                if j + 2 < 20:
                    reads(j + 2, t)
                k.tick()

    def wphi_frags(self):
        k = self.k
        wf = self.wf = k.a(60, at=196)
        ad, t = k.v(), k.v()
        k.e("v_mul_u32_u24 %s, 800, %s\nv_mad_u32_u24 %s, %s, 40, %s\nv_add_u32 %s, %d, %s", t, self.v_g, t, self.v_r, t, t, WPH, t)
        k.e("v_cmp_eq_u32 vcc, %s, %s\nv_mov_b32 %s, %d\nv_cndmask_b32 %s, %s, %s, vcc", self.v_g, self.v_cc, ad, ZERO, ad, ad, t)
        for u in range(3):
            for t5 in range(5):
                d = wf[4 * (5 * u + t5):4 * (5 * u + t5) + 4]
                k.e("ds_read_b64_tr_b16 %s, %s offset:%d", d[0:2], ad, 320 * u + 8 * t5)
                if u < 2:
                    k.e("ds_read_b64_tr_b16 %s, %s offset:%d", d[2:4], ad, 320 * u + 160 + 8 * t5)
                else:
                    k.e("v_accvgpr_write_b32 %s, 0\nv_accvgpr_write_b32 %s, 0", d[2], d[3])
        k.drain_ds()
        k.release(ad, t)

    def phi(self, acc, name, after=None, hook=lambda n: None):
        k = self.k
        kb, wf = self.abuf[40:52], self.wf
        k.e("v_mov_b32 %s, 0\nv_mov_b32 %s, 0", kb[10], kb[11])
        k.tick()
        for i in range(10):
            k.e("v_cvt_pk_bf16_f32 %s, %s, %s", kb[i], acc[2 * i], acc[2 * i + 1])
        p = acc
        for u in range(3):
            for t in range(5):
                self.mfma(p[4 * t:4 * t + 4], wf[4 * (5 * u + t):4 * (5 * u + t) + 4], kb[4 * u:4 * u + 4], 0 if u == 0 else None)
                k.tick()
        if after:
            after()
        self.dump(name, p)
        m = k.v(2)
        k.e("v_max3_f32 %s, %s, %s, %s\nv_min3_f32 %s, %s, %s, %s", m[0], p[0], p[1], p[2], m[1], p[0], p[1], p[2])
        for i in range(3, 19, 2):
            k.e("v_max3_f32 %s, %s, %s, %s\nv_min3_f32 %s, %s, %s, %s", m[0], m[0], p[i], p[i + 1], m[1], m[1], p[i], p[i + 1])
        k.e("v_max_f32 %s, %s, %s\nv_min_f32 %s, %s, %s", m[0], m[0], p[19], m[1], m[1], p[19])
        k.e("v_pk_mul_f32 %s, %s, %s", m, m, self.s_L)
        e = self.abuf[0:40]
        for i in range(10):
            q = p[2 * i:2 * i + 2]
            k.e("v_pk_fma_f32 %s, %s, %s, %s op_sel_hi:[1,1,0] neg_lo:[0,0,1] neg_hi:[0,0,1]", e[2 * i:2 * i + 2], q, self.s_L, m)
            k.e("v_pk_fma_f32 %s, %s, %s, %s op_sel:[0,0,1] op_sel_hi:[1,1,1] neg_lo:[1,0,0] neg_hi:[1,0,0]",
                e[20 + 2 * i:22 + 2 * i], q, self.s_L, m)
            k.tick()
        hook(16)
        for i in range(40):
            k.e("v_exp_f32 %s, %s", e[i], e[i])
            k.tick()
        hook(17)
        sm = k.v(4)
        for h in range(2):
            s2 = sm[2 * h:2 * h + 2]
            k.e("v_pk_add_f32 %s, %s, %s", s2, e[20 * h:20 * h + 2], e[20 * h + 2:20 * h + 4])
            for i in range(2, 10):
                k.e("v_pk_add_f32 %s, %s, %s", s2, s2, e[20 * h + 2 * i:20 * h + 2 * i + 2])
        k.e("v_add_f32 %s, %s, %s\nv_add_f32 %s, %s, %s", m[0], sm[0], sm[1], m[1], sm[2], sm[3])
        k.e("v_rcp_f32 %s, %s\nv_rcp_f32 %s, %s", m[0], m[0], m[1], m[1])
        for i in range(20):
            q = e[2 * i:2 * i + 2]
            sel = "op_sel_hi:[1,0]" if i < 10 else "op_sel:[0,1] op_sel_hi:[1,1]"
            k.e("v_pk_mul_f32 %s, %s, %s %s", q, q, m, sel)
            k.tick()
        for i in range(20):
            k.e("v_cvt_pk_bf16_f32 %s, %s, %s", p[i], e[2 * i], e[2 * i + 1])
            k.tick()
        k.release(m, sm)
        return p

    def phase_a(self):
        k, o = self.k, self.o
        self.b_w = {}
        self.w_dma(0, now=False)
        self.w_dma(1, now=False)
        self.ln1()
        self.stamp("ln1")
        self.abuf = k.v(60)
        acc = k.v(20)
        st = self.s_tmp

        def hook(n):
            if n == o["il_at"] and n != 5:
                self.init_load()
            for m in range(2, o["look"] + 1):
                if n + m < 10 and (n + m < 4 or n >= 1):
                    self.w_dma(n + m)
            if n == 0:
                self.tables_to_lds()
            if n == o["init_at"] and n < 5:
                self.signal_init()
            if n == 1:
                self.wphi_frags()
            if n == o["tch_at"]:
                for bit, a in ((1, (O_OFF, 20)), (2, (H_OFF, 20)), (4, (F_OFF, 48)), (2, (HS_OFF, 1))):
                    if bit & o["tmask"]:
                        self.touch_lines(*a)
            if n == o["ic_at"]:
                self.init_check()
            if n == o["s1_use"]:
                self.kv_reduce()
            if n == o["s1_at"]:
                self.kv_reduce_load()
            if n == o["fin_at"]:
                self.kv_final_load()
            for i in range(5):
                if n == o["q%d" % i]:
                    self.w_dma(10 + i)
            if n == o["wo_at"]:
                k.bg_flush(self.b_w[9])
                self.queue_wo()
                k.spread(o["n_v"], 450 * max(1, 10 - n))
            if n == o["nq_at"]:
                k.spread(o["n_q"], 330 * (15 - n) - 160)
            if n == 13:
                t, z = k.v(), k.v(2)
                k.e("v_lshlrev_b32 %s, 3, v0\nv_mov_b32 %s, 0\nv_mov_b32 %s, 0\nv_add_u32 %s, %d, %s", t, z[0], z[1], t, ZERO2, t)
                k.e("ds_write_b64 %s, %s", t, z)
                k.release(t, z)

        self.gemm_matrix(0, acc, hook)
        self.stamp("K gemm")
        self.dump("k", acc)
        if o["init_at"] == 5:
            self.signal_init()
        if o["il_at"] == 5:
            self.init_load()
        self.w_dma(7, now=False)
        self.w_dma(8, now=False)
        k.spread(10, 900, 100)
        ph = self.phi(acc, "pk")
        self.dump("phik", ph)
        t, wtr = k.v(), k.v()
        k.e("s_lshl_b32 %s, %s, 4\nv_add_u32 %s, %s, %s\nv_mul_u32_u24 %s, %d, %s", st, self.s_wv, wtr, st, self.v_s, wtr, TRP, wtr)
        k.e("v_mul_u32_u24 %s, 80, %s\nv_add_u32 %s, %s, %s", t, self.v_g, t, t, wtr)
        for i in range(5):
            k.e("ds_write_b128 %s, %s offset:%d", t, ph[4 * i:4 * i + 4], TR + 16 * i)
        self.stamp("phi k")
        k.bg_flush(self.b_w[8])
        self.w_dma(9, now=False)
        k.spread(5, 300)
        self.gemm_matrix(5, acc, hook)
        self.stamp("V gemm")
        self.dump("v", acc)
        vb = k.v(12)
        k.e("v_mov_b32 %s, 0x3f80\nv_mov_b32 %s, 0\nv_mad_u32_u24 %s, %s, 48, %s", vb[10], vb[11], t, self.v_g, wtr)
        for i in range(10):
            k.e("v_cvt_pk_bf16_f32 %s, %s, %s", vb[i], acc[2 * i], acc[2 * i + 1])
        for i in range(3):
            k.e("ds_write_b128 %s, %s offset:%d", t, vb[4 * i:4 * i + 4], TR + 320 + 16 * i)
        k.release(vb, t, wtr)
        self.kv_partial()
        self.stamp("kv partial")
        hook(91)
        self.gemm_matrix(10, acc, hook)
        hook(15)
        self.stamp("Q gemm")
        self.dump("q", acc)
        k.release(self.xf, self.v_wr, self.v_qr, self.v_wd, self.s_wq, self.s_wq2)
        self.extra = [k.v(4) for _ in range(21)]
        k.spread(o["n_phq"], 1000)
        self.phq = self.phi(acc, "pq", self.queue_w1b, hook)
        k.release(self.abuf)
        self.dump("phiq", self.phq)
        self.stamp("phi q")

    def tables_to_lds(self):
        k = self.k
        t, z = k.v(), k.v(2)
        k.e("v_lshlrev_b32 %s, 3, v0\nv_mov_b32 %s, 0\nv_mov_b32 %s, 0\nv_add_u32 %s, %d, %s", t, z[0], z[1], t, ZERO, t)
        k.e("ds_write_b64 %s, %s", t, z)
        k.e("v_lshlrev_b32 %s, 4, v0\nv_min_u32 %s, 3200, %s\nv_add_u32 %s, %d, %s", t, t, t, t, WPH, t)
        k.e("ds_write_b128 %s, %s", t, self.v_wphi)
        k.release(t, z, self.v_wphi, self.v_wpa)

    def signal_init(self):
        k = self.k
        lab = self.wave_is(3)
        t = k.v(2)
        st = self.s_tmp
        k.e("s_getreg_b32 %s, hwreg(HW_REG_XCC_ID, 0, 3)\ns_or_b32 %s, %s, %s\nv_mov_b32 %s, %s\nv_mov_b32 %s, %s",
            st, st, st, self.s_tag[1], t[0], self.s_tag[0], t[1], st)
        k.e("s_lshl_b32 %s, %s, 3\ns_add_u32 %s, %s, %s\ns_lshl_b32 %s, %s, 3\ns_add_u32 %s, %s, 0x%x",
            st, self.s_G, st, st, self.s_c, st, st, st, st, READY_OFF)
        self.set_exec(1)
        if self.o["meas"]:
            k.e("v_mov_b32 %s, %s\ns_lshl_b32 %s, s2, 2\ns_add_u32 %s, %s, 0x%x", self.v_junk, self.s_t0[0], self.s_tmp2, self.s_tmp2, self.s_tmp2, READY_OFF + 0x1000)
            k.e("buffer_store_dword %s, %s, %s, %s offen sc1", self.v_junk, self.v_zero, self.WS, self.s_tmp2)
            k.drain_vm()
        k.e("buffer_store_dwordx2 %s, %s, %s, %s offen sc1", t, self.v_zero, self.WS, st)
        self.set_exec(-1)
        k.release(t)
        self.close(lab)

    def check_loop(self, test, reload):
        k = self.k
        top, ok = k.label("L_chk"), k.label("L_ok")
        k.e("s_mov_b32 %s, 0", self.s_spin)
        k.put(top)
        test()
        k.e("s_cbranch_vccz %s\ns_add_u32 %s, %s, 1\ns_cmp_gt_u32 %s, %d\ns_cbranch_scc1 %s", ok, self.s_spin, self.s_spin, self.s_spin, SPIN, ok)
        k.cond_begin()
        reload()
        k.drain_vm()
        k.cond_end()
        k.e("s_branch %s", top)
        k.put(ok)

    def init_load(self):
        k = self.k
        if not hasattr(self, "v_init"):
            self.v_init = k.v(8)
        k.e("s_mov_b32 %s, 0x%x", self.s_tmp, READY_OFF)
        k.e("buffer_load_dwordx4 %s, %s, %s, %s offen sc1", self.v_init[0:4], self.v_l16, self.WS, self.s_tmp)
        self.t_init = k.e("buffer_load_dwordx4 %s, %s, %s, %s offen offset:1024 sc1", self.v_init[4:8], self.v_l16, self.WS, self.s_tmp)

    def init_check(self):
        k = self.k
        x, u, w = self.v_init, k.v(), k.v()
        k.wait_vm(self.t_init)

        def test():
            for i in range(4):
                k.e("v_xor_b32 %s, %s, %s\nv_lshrrev_b32 %s, 3, %s", w, self.s_tag[1], x[2 * i + 1], w, w)
                if i:
                    k.e("v_or_b32 %s, %s, %s", w, w, u)
                k.e("v_xor_b32 %s, %s, %s\nv_or_b32 %s, %s, %s", u, self.s_tag[0], x[2 * i], u, u, w)
            k.e("v_cmp_ne_u32 vcc, 0, %s", u)
        self.check_loop(test, self.init_load)
        st, s2 = self.s_tmp, self.s_tmp2
        k.e("s_getreg_b32 %s, hwreg(HW_REG_XCC_ID, 0, 3)\ns_or_b32 %s, %s, %s", st, st, st, self.s_tag[1])
        for h in range(2):
            k.e("v_xor_b32 %s, %s, %s\nv_xor_b32 %s, %s, %s\nv_or_b32 %s, %s, %s", u, st, x[4 * h + 1], w, st, x[4 * h + 3], x[4 * h], u, w)
        k.e("s_cmp_ge_u32 %s, 16\ns_cselect_b64 vcc, -1, 0\nv_cndmask_b32 %s, %s, %s, vcc\nv_cmp_ne_u32 vcc, 0, %s", self.s_G, u, x[0], x[4], u)
        k.e("s_and_b32 %s, %s, 15\ns_lshl_b32 %s, %s, 2\ns_lshr_b64 vcc, vcc, %s\ns_and_b32 %s, vcc_lo, 15", st, self.s_G, st, st, st, s2)
        k.e("s_cmp_eq_u32 %s, 0\ns_cselect_b32 %s, %d, 0", s2, self.s_fast, 0 if self.force_slow else 1)
        k.release(x, u, w)
        self.stamp("init seen")

    def kv_partial(self):
        k = self.k
        st = self.s_tmp
        aa, ab, wa, ra = k.v(), k.v(), k.v(), k.v()
        k.e("v_mul_u32_u24 %s, %d, %s\nv_lshl_add_u32 %s, %s, 3, %s", aa, TRP, self.v_tok, aa, self.v_cc, aa)
        k.e("s_mul_i32 %s, %s, 48\ns_add_u32 %s, %s, %d\nv_add_u32 %s, %s, %s", st, self.s_wv, st, st, TR + 320, ab, st, aa)
        k.e("s_mul_i32 %s, %s, 80\ns_add_u32 %s, %s, %d\nv_add_u32 %s, %s, %s", st, self.s_wv, st, st, TR, aa, st, aa)
        k.e("s_mul_i32 %s, %s, 2592\ns_add_u32 %s, %s, %d\nv_add_u32 %s, %s, %s", st, self.s_wv, st, st, KVS, ra, st, self.v_l16)
        k.e("v_mul_u32_u24 %s, 80, %s\nv_lshl_add_u32 %s, %s, 3, %s\nv_add_u32 %s, %s, %s", wa, self.v_s, wa, self.v_g, wa, wa, st, wa)
        k.barrier()
        fa, fb, d = self.abuf[0:24], self.abuf[24:40], k.v(24)
        for ks in range(2):
            for fr, ad, n in ((fa, aa, 3), (fb, ab, 2)):
                for t in range(n):
                    x = fr[4 * (n * ks + t):4 * (n * ks + t) + 4]
                    o = ks * 32 * TRP + 32 * t
                    k.e("ds_read_b64_tr_b16 %s, %s offset:%d\nds_read_b64_tr_b16 %s, %s offset:%d", x[0:2], ad, o, x[2:4], ad, o + 8 * TRP)
        order = [(2, 0), (2, 1), (0, 0), (0, 1), (1, 0), (1, 1)]
        for ks in range(2):
            for tf, td in order:
                self.mfma(d[4 * (2 * tf + td):4 * (2 * tf + td) + 4], fa[4 * (3 * ks + tf):4 * (3 * ks + tf) + 4],
                          fb[4 * (2 * ks + td):4 * (2 * ks + td) + 4], 0 if ks == 0 else None)
        pk = self.abuf[40:52]
        for i, (tf, td) in enumerate(order):
            x = d[4 * (2 * tf + td):4 * (2 * tf + td) + 4]
            k.e("v_cvt_pk_bf16_f32 %s, %s, %s\nv_cvt_pk_bf16_f32 %s, %s, %s", pk[2 * i], x[0], x[1], pk[2 * i + 1], x[2], x[3])
            k.e("ds_write_b64 %s, %s offset:%d", wa, pk[2 * i:2 * i + 2], 1280 * td + 32 * tf)
        k.e("ds_read_b128 %s, %s\nds_read_b128 %s, %s offset:1024", d[0:4], ra, d[4:8], ra)
        k.e("buffer_store_dwordx4 %s, %s, %s, %s offen sc1", d[0:4], self.v_l16, self.WS, self.s_kvp)
        k.e("buffer_store_dwordx4 %s, %s, %s, %s offen offset:1024 sc1", d[4:8], self.v_hi41, self.WS, self.s_kvp)
        k.release(aa, ab, wa, ra, d, self.v_tok, self.s_kvp)

    def poison_test(self, x, m):
        k = self.k
        k.e("v_max3_u32 %s, %s, %s, %s", m, x[0], x[1], x[2])
        for i in range(3, x.n - 1, 2):
            k.e("v_max3_u32 %s, %s, %s, %s", m, m, x[i], x[i + 1])
        k.e("v_max_u32 %s, %s, %s\nv_cmp_eq_u32 vcc, -1, %s", m, m, x[x.n - 1], m)

    def kv_reduce_load(self):
        k = self.k
        st = self.s_tmp
        if not hasattr(self, "v_kx"):
            self.v_kx, self.v_ka = k.v(16), k.v()
            t, u = self.v_kx[0], self.v_kx[1]
            k.e("v_lshrrev_b32 %s, 3, %s\nv_mul_u32_u24 %s, %d, %s\nv_and_b32 %s, 7, %s\nv_lshl_add_u32 %s, %s, 4, %s",
                t, self.v_lane, t, 4 * KVH, t, u, self.v_lane, t, u, t)
            k.e("v_cmp_gt_u32 vcc, 5, %s\nv_mov_b32 %s, 0x%x\nv_cndmask_b32 %s, %s, %s, vcc", u, u, FAR, self.v_ka, u, t)
        k.e("s_mul_i32 %s, %s, %d\ns_add_u32 %s, %s, %s\ns_add_u32 %s, %s, 0x%x", st, self.s_c, 128 * KVH, st, st, self.s_kvrow, st, st, KVP_OFF)
        for i in range(4):
            self.t_kx = k.e("buffer_load_dwordx4 %s, %s, %s, %s offen sc1", self.v_kx[4 * i:4 * i + 4], self.v_ka, self.WS, st)
            if i < 3:
                k.e("s_add_u32 %s, %s, %d", st, st, 32 * KVH)

    def kv_reduce(self):
        k = self.k
        x, m, a, p = self.v_kx, k.v(), k.v(8), k.v(4)
        k.wait_vm(self.t_kx)
        self.check_loop(lambda: self.poison_test(x, m), self.kv_reduce_load)
        self.stamp("kvp seen")
        for i in range(16):
            d = a[2 * (i & 3):2 * (i & 3) + 2] if i < 4 else p[2 * (i & 1):2 * (i & 1) + 2]
            k.e("v_lshlrev_b32 %s, 16, %s\nv_and_b32 %s, 0xffff0000, %s", d[0], x[i], d[1], x[i])
            if i >= 4:
                k.e("v_pk_add_f32 %s, %s, %s", a[2 * (i & 3):2 * (i & 3) + 2], a[2 * (i & 3):2 * (i & 3) + 2], d)
        for i in range(8):
            k.e("v_add_f32_dpp %s, %s, %s row_ror:8 row_mask:0xf bank_mask:0xf", x[i], a[i], a[i])
        for i in range(4):
            self.reduce2(x[2 * i], x[2 * i + 1])
        for i in range(4):
            k.e("v_cvt_pk_bf16_f32 %s, %s, %s", p[i], x[2 * i], x[2 * i + 1])
        k.e("buffer_store_dwordx4 %s, %s, %s, %s offen sc1", p, self.v_lo5, self.WS, self.s_kvf)
        k.release(x, m, a, p, self.v_ka, self.v_lo5, self.s_kvf, self.s_kvrow)
        self.stamp("kv reduced")

    def kv_final_load(self):
        k = self.k
        st = self.s_tmp
        if not hasattr(self, "v_fx"):
            self.v_fx = k.v(8)
        k.e("s_mul_i32 %s, %s, %d\ns_add_u32 %s, %s, 0x%x", st, self.s_cw, KVH, st, st, KVF_OFF)
        k.e("buffer_load_dwordx4 %s, %s, %s, %s offen sc1", self.v_fx[0:4], self.v_l16, self.WS, st)
        self.t_fx = k.e("buffer_load_dwordx4 %s, %s, %s, %s offen offset:1024 sc1", self.v_fx[4:8], self.v_hi41, self.WS, st)

    def attn_out(self):
        k = self.k
        st = self.s_tmp
        x, la, t, u = self.v_fx, k.v(), k.v(), k.v()
        k.e("s_lshl_b32 %s, %s, 11\ns_add_u32 %s, %s, %d\nv_add_u32 %s, %s, %s", st, self.s_wv, st, st, KVL, la, st, self.v_l16)
        k.e("v_mul_u32_u24 %s, 80, %s\nv_lshl_add_u32 %s, %s, 11, %s\nv_add_u32 %s, %d, %s", t, self.v_cc, t, self.v_g, t, t, KVL, t)
        k.e("v_cmp_eq_u32 vcc, %s, %s\nv_mov_b32 %s, %d\nv_cndmask_b32 %s, %s, %s, vcc", self.v_g, self.v_r, u, ZERO2, u, u, t)
        k.wait_vm(self.t_fx)
        self.check_loop(lambda: self.poison_test(x, t), self.kv_final_load)
        self.stamp("kvf seen")
        k.e("ds_write_b128 %s, %s\nds_write_b128 %s, %s offset:1024", la, x[0:4], la, x[4:8])
        k.bg_now(self.o["n_att"])
        k.barrier()
        if self.o["fine"] & 2:
            self.stamp("att bar")
        self.queue_w2a()
        k.bg_now(self.o["n_att2"])
        fr, d, ob = [k.v(4) for _ in range(16)], k.v(24), k.v(10)
        order = [(t6, j) for j in range(5) for t6 in (5, 0, 1, 2, 3, 4)]
        rd = lambda i: k.e("ds_read_b128 %s, %s offset:%d", fr[i % 16], u, 320 * order[i][0] + 16 * order[i][1])
        for i in range(12):
            rd(i)
        for i, (t6, j) in enumerate(order):
            self.mfma(d[4 * t6:4 * t6 + 4], fr[i % 16], self.phq[4 * j:4 * j + 4], 0 if j == 0 else None)
            if i + 12 < 30:
                rd(i + 12)
        k.e("v_add_f32 %s, 0x358637bd, %s\nv_rcp_f32 %s, %s", d[20], d[20], d[20], d[20])
        for i in range(10):
            k.e("v_pk_mul_f32 %s, %s, %s op_sel_hi:[1,0]", d[2 * i:2 * i + 2], d[2 * i:2 * i + 2], d[20:22])
        self.dump("o", d[0:20])
        for i in range(10):
            k.e("v_cvt_pk_bf16_f32 %s, %s, %s", ob[i], d[2 * i], d[2 * i + 1])
        if self.o["fine"] & 2:
            self.stamp("o ready")
        self.store_slice(ob, O_OFF)
        k.drain_vm()
        self.set_flag(self.s_oflag, True)
        k.release(x, la, t, u, d, ob, self.phq, self.v_hi41, *fr)
        self.stamp("o stored")

    def store_slice(self, ob, base):
        k = self.k
        st = self.s_tmp
        k.e("s_mul_i32 %s, %s, 2560\ns_add_u32 %s, %s, 0x%x", st, self.s_gcw, st, st, base)

        def fn(fl):
            k.e("buffer_store_dwordx4 %s, %s, %s, %s offen%s", ob[0:4], self.v_l16, self.WS, st, fl)
            k.e("buffer_store_dwordx4 %s, %s, %s, %s offen offset:1024%s", ob[4:8], self.v_l16, self.WS, st, fl)
            k.e("buffer_store_dwordx2 %s, %s, %s, %s offen offset:2048%s", ob[8:10], self.v_l8, self.WS, st, fl)
        self.shared_stores(fn, 1 if base == O_OFF else 2)

    def queue_frags(self, stream, dests, first):
        k = self.k

        def piece(i, d):
            if i and i % 4 == 0:
                k.e("s_add_u32 %s, %s, 4096", stream, stream)
            return k.e("buffer_load_dwordx4 %s, %s, %s, %s offen offset:%d sc1", d, self.v_l16, self.WS, stream, 1024 * (i % 4))
        for i, d in enumerate(dests):
            k.bg_push(lambda i=first + i, d=d: piece(i, d), 100, [d])

    def stream_base(self, base, per_wave):
        k = self.k
        r = k.s()
        k.e("s_mul_i32 %s, %s, %d\ns_add_u32 %s, %s, 0x%x", r, self.s_cw, per_wave * 1024, r, r, base)
        return r

    def queue_wo(self):
        k = self.k
        self.wo = [k.a(4, at=4 * i) for i in range(25)]
        self.s_wo = self.stream_base(WO_OFF, 25)
        self.queue_frags(self.s_wo, self.wo, 0)
        self.w1 = [k.a(4, at=100 + 4 * i) for i in range(24)]
        self.s_w1 = self.stream_base(W1_OFF, 60)
        self.queue_frags(self.s_w1, self.w1, 0)

    def queue_w1b(self):
        k = self.k
        k.release(self.wf)
        rest = [k.a(4, at=196 + 4 * i) for i in range(15)] + self.extra
        self.queue_frags(self.s_w1, rest, 24)
        self.w1 += rest

    def queue_w2a(self):
        k = self.k
        self.s_w2 = self.stream_base(W2_OFF, 60)
        self.s_park = k.s()
        k.e("s_mul_i32 %s, %s, 20480", self.s_park, self.s_wv)

        def piece(i):
            k.e("s_add_u32 m0, %s, %d", self.s_park, PARK + 4096 * (i // 4))
            if i and i % 4 == 0:
                k.e("s_add_u32 %s, %s, 4096", self.s_w2, self.s_w2)
            return k.e("buffer_load_dwordx4 %s, %s, %s offen offset:%d sc1 lds", self.v_l16, self.WS, self.s_w2, 1024 * (i % 4))
        for i in range(20):
            self.b_park = k.bg_push(lambda i=i: piece(i), 100)

    def queue_w2b(self):
        self.queue_frags(self.s_w2, self.wo, 20)

    def poll_group(self, kind, mine):
        k = self.k
        st = self.s_tmp
        k.e("s_mul_i32 %s, %s, 384\ns_add_u32 %s, %s, 0x%x", st, self.s_G, st, st, FLAG_OFF + 128 * kind)
        if mine:
            k.e("s_lshl_b32 %s, %s, 5\ns_add_u32 %s, %s, %s", self.s_tmp2, self.s_wv, st, st, self.s_tmp2)
        self.poll(self.v_l4, st, 8 if mine else 32)

    def ksplit_gemm(self, wfr, nks, load_tt, extra, after=None):
        k = self.k
        acc = k.v(40)
        nbuf = 4 if nks == 5 else 2
        bufs = [k.v(4 * nks) for _ in range(nbuf)]
        stt, wa = self.s_tt, k.v(3, align=1)

        def queue(i):
            for fn, d in load_tt(bufs[i % nbuf], i):
                k.bg_push(fn, 75, [d], front=(nks == 5 or i == 0))
        for i in range(nbuf):
            queue(i)
        k.bg_now(12)
        for i in range(3):
            k.e("s_mul_i32 %s, %s, 15360\ns_add_u32 %s, %s, %d\nv_add_u32 %s, %s, %s",
                self.s_tmp, stt[i], self.s_tmp, self.s_tmp, RED + (2 - i) * 5120, wa[i], self.s_tmp, self.v_l16)
        k.spread(12 + extra if nks == 5 else 100, 1400 if nks == 5 else 7500)
        for i in range(4):
            k.topup = self.o["top"] if nks != 5 else 0
            a = acc[20 * (i & 1):20 * (i & 1) + 20]
            b = bufs[i % nbuf]
            pend = []
            if i:
                prev = acc[20 * ((i - 1) & 1):20 * ((i - 1) & 1) + 20]
                pend = [(wa[i - 1], prev[4 * t:4 * t + 4], 1024 * t) for t in range(5)]
            for ks in range(nks):
                for t in range(5):
                    self.mfma(a[4 * t:4 * t + 4], wfr[5 * ks + t], b[4 * ks:4 * ks + 4], 0 if ks == 0 else None)
                    if pend and ks * 5 + t >= 8 and (ks * 5 + t) % 3 == 2:
                        k.e("ds_write_b128 %s, %s offset:%d", *pend.pop(0))
                    else:
                        k.tick()
            assert not pend
            if self.o["fine"] & 2:
                self.stamp("tt %d" % i)
            if i + nbuf < 4:
                queue(i + nbuf)
        k.topup = 0
        if after:
            after()
        k.release(*bufs)
        rd = k.v(60)
        k.e("s_mul_i32 %s, %s, 15360\ns_add_u32 %s, %s, %d\nv_add_u32 %s, %s, %s",
            self.s_tmp, self.s_wv, self.s_tmp, self.s_tmp, RED, wa[0], self.s_tmp, self.v_l16)
        k.barrier()
        if self.o["fine"] & 2:
            self.stamp("red bar")
        for i in range(15):
            k.e("ds_read_b128 %s, %s offset:%d", rd[4 * i:4 * i + 4], wa[0], 1024 * i)
        out = acc[20:40]
        for sl in range(3):
            for i in range(10):
                k.e("v_pk_add_f32 %s, %s, %s", out[2 * i:2 * i + 2], out[2 * i:2 * i + 2], rd[20 * sl + 2 * i:20 * sl + 2 * i + 2])
        k.release(rd, wa, acc[0:20])
        return out

    def tile_bases(self, base, per_wave, per_tile, second):
        k = self.k
        sb = k.s(8, align=1)
        st = self.s_tmp
        k.e("s_lshl_b32 %s, %s, 2\ns_add_u32 %s, %s, %s\ns_mul_i32 %s, %s, %d\ns_add_u32 %s, %s, 0x%x",
            st, self.s_G, st, st, self.s_wv, st, st, per_wave, st, st, base)
        for i in range(4):
            k.e("s_mul_i32 %s, %s, %d\ns_add_u32 %s, %s, %s\ns_add_u32 %s, %s, %d",
                sb[2 * i], self.s_tt[i], per_tile, sb[2 * i], sb[2 * i], st, sb[2 * i + 1], sb[2 * i], second)
        return sb

    def add_packed(self, acc, pk, scale=None):
        k = self.k
        tp = k.v(4)
        for i in range(10):
            p = tp[2 * (i & 1):2 * (i & 1) + 2]
            k.e("v_lshlrev_b32 %s, 16, %s\nv_and_b32 %s, 0xffff0000, %s", p[0], pk[i], p[1], pk[i])
            if scale is None:
                k.e("v_pk_add_f32 %s, %s, %s", p, p, acc[2 * i:2 * i + 2])
            else:
                k.e("v_pk_fma_f32 %s, %s, %s, %s op_sel_hi:[1,0,1]", p, acc[2 * i:2 * i + 2], scale, p)
            k.e("v_cvt_pk_bf16_f32 %s, %s, %s", pk[i], p[0], p[1])
        k.release(tp)

    def phase_b(self):
        k = self.k
        k.bg_now(self.o["pre_o"])
        self.s_tt = k.s(4, align=1)
        for i in range(4):
            k.e("s_add_u32 %s, %s, %d\ns_and_b32 %s, %s, 3", self.s_tt[i], self.s_wv, 1 + i, self.s_tt[i], self.s_tt[i])
        sb = self.tile_bases(O_OFF, 20480, 2560, 10240)
        self.poll_group(0, True)
        self.stamp("o seen")

        def load_tt(b, i):
            ld = lambda w, d, v, so, off: (lambda: k.e("buffer_load_dwordx%d %s, %s, %s, %s offen offset:%d sc1", w, d, v, self.WS, so, off), d)
            A, B = sb[2 * i], sb[2 * i + 1]
            return [ld(4, b[0:4], self.v_l16, A, 0), ld(4, b[4:8], self.v_l16, A, 1024), ld(2, b[8:10], self.v_l8, A, 2048),
                    ld(2, b[10:12], self.v_l8, B, 2048), ld(4, b[12:16], self.v_l16, B, 0), ld(4, b[16:20], self.v_l16, B, 1024)]
        acc = self.ksplit_gemm(self.wo, 5, load_tt, self.o["n_b"], self.queue_w2b)
        self.stamp("wo gemm")
        self.dump("attn", acc)
        self.add_packed(acc, self.xr)
        self.hb = hb = self.xr
        a, b, ones = acc[0], acc[1], acc[2]
        k.e("v_mov_b32 %s, 0\nv_mov_b32 %s, 0\nv_mov_b32 %s, 0x3f803f80", a, b, ones)
        for i in range(10):
            k.e("v_dot2c_f32_bf16 %s, %s, %s\nv_dot2c_f32_bf16 %s, %s, %s", a, hb[i], ones, b, hb[i], hb[i])
        self.reduce2(a, b)
        self.store_slice(hb, H_OFF)
        st = self.s_tmp
        k.e("s_lshl_b32 %s, %s, 7\ns_add_u32 %s, %s, 0x%x", st, self.s_gcw, st, st, HS_OFF)
        self.set_exec(0xFFFF)
        self.shared_stores(lambda fl: k.e("buffer_store_dwordx2 %s, %s, %s, %s offen%s", acc[0:2], self.v_l8, self.WS, st, fl), 2)
        self.set_exec(-1)
        k.drain_vm()
        k.e("s_add_u32 %s, %s, 128", st, self.s_oflag)
        self.set_flag(st, True)
        k.release(acc, sb)
        self.stamp("h stored")

    def phase_c(self, refill):
        k = self.k
        k.bg_now(self.o["pre_h"])
        st, s2 = self.s_tmp, self.s_tmp2
        sh = k.s()
        k.e("s_mul_i32 %s, %s, 81920\ns_add_u32 %s, %s, %s\ns_add_u32 %s, %s, 0x%x", sh, self.s_G, sh, sh, self.s_m0w, sh, sh, H_OFF)
        sx, ad, ss = k.v(16), k.v(), k.s()
        k.e("v_lshlrev_b32 %s, 7, %s\nv_lshl_add_u32 %s, %s, 3, %s", ad, self.v_g, ad, self.v_s, ad)
        k.e("s_lshl_b32 %s, %s, 12\ns_add_u32 %s, %s, 0x%x", ss, self.s_G, ss, ss, HS_OFF)
        acc, bb, self.cs, ones = k.v(48), k.v(32), k.v(12), k.v(4)
        a16, a8 = k.v(2, align=1), k.v(2, align=1)
        k.e("v_add_u32 %s, %d, %s\nv_add_u32 %s, %d, %s", a16[0], HL, self.v_l16, a16[1], HL + 40960, self.v_l16)
        k.e("v_add_u32 %s, %d, %s\nv_add_u32 %s, %d, %s", a8[0], HL, self.v_l8, a8[1], HL + 40960, self.v_l8)
        for i in range(4):
            k.e("v_mov_b32 %s, 0x3f803f80", ones[i])
        cs_done = self.o["cs_early"]

        def colsum(ks):
            for t in range(3):
                self.mfma(self.cs[4 * t:4 * t + 4], self.w1[3 * ks + t], ones, 0 if ks == 0 else None)
                k.tick()
        for ks in range(cs_done):
            colsum(ks)
        self.poll_group(1, False)
        self.stamp("h seen")

        def piece(q, n):
            if n == 0:
                k.e("s_add_u32 m0, %s, %d", self.s_m0w, HL + 20480 * q)
            if n == 4:
                k.e("s_add_u32 %s, %s, 4096\ns_add_u32 m0, %s, %d", sh, sh, self.s_m0w, HL + 20480 * q + 4096)
            t = k.e("buffer_load_dwordx4 %s, %s, %s offen offset:%d sc1 lds", self.v_l16, self.WS, sh, 1024 * (n % 4))
            if n == 4:
                k.e("s_add_u32 %s, %s, 16384", sh, sh)
            return t
        tq = []
        for q in range(4):
            for n in range(5):
                en = k.bg_push(lambda q=q, n=n: piece(q, n), 75, front=1)
            tq.append(en)
        for p in range(8):
            k.bg_push(lambda p=p: k.e("buffer_load_dwordx2 %s, %s, %s, %s offen offset:%d sc1", sx[2 * p:2 * p + 2], ad, self.WS, ss, 512 * p),
                      40, [sx[2 * p:2 * p + 2]], front=1)
        k.bg_now(10)
        k.spread(18 + self.o["n_c"], 240 * self.o["stop_c"])

        def read(d, ks, tt):
            q, j = divmod(ks, 5)
            o = 20480 * (q & 1) + 2560 * tt
            if j == 2:
                k.e("ds_read_b64 %s, %s offset:%d\nds_read_b64 %s, %s offset:%d", d[0:2], a8[q >> 1], o + 2048, d[2:4], a8[q >> 1], o + 10240 + 2048)
            else:
                k.e("ds_read_b128 %s, %s offset:%d", d, a16[q >> 1], o + (0, 1024, 0, 10240, 11264)[j])

        entered = set()

        def enter(q):
            if q not in entered:
                entered.add(q)
                k.wait_bg(tq[q])
                k.barrier(drain=False)

        nk = 20 - 5 * self.o["ntail"]
        seq = [(ks, tt) for ks in range(nk) for tt in range(4)] + [(ks, tt) for tt in range(4) for ks in range(nk, 20)]
        slot = lambda i: bb[4 * (i % 8):4 * (i % 8) + 4]

        def fetch(i):
            if i < len(seq):
                ks, tt = seq[i]
                for q in range(ks // 5, (ks // 5 if ks < nk else 3) + 1):
                    enter(q)
                read(slot(i), ks, tt)

        s4, s8 = k.s(), k.s()
        k.e("s_lshl_b32 %s, %s, 3\ns_add_u32 %s, %s, %s\ns_mul_i32 %s, %s, 24576\ns_add_u32 %s, %s, 0x%x", st, self.s_G, st, st, self.s_c, st, st, st, st, F_OFF)
        k.e("s_lshl_b32 %s, %s, 10\ns_add_u32 %s, %s, %s", s4, self.s_wv, s4, s4, st)
        k.e("s_lshl_b32 %s, %s, 9\ns_add_u32 %s, %s, %s\ns_add_u32 %s, %s, 4096", s8, self.s_wv, s8, s8, st, s8, s8)
        fb = k.v(24 if "f" in self.dumps else 12)
        mean = sx[4:8]

        def stats():
            ops = [lambda p=p, h=h: k.e("v_add_f32 %s, %s, %s", sx[h], sx[h], sx[2 * p + h]) for p in range(1, 8) for h in range(2)]
            ops.append(lambda: self.mean_rstd(sx[0], sx[1], sx[2]))
            r0, r1, r2, r3 = (mean[i] for i in range(4))
            ops.append(lambda: k.e("v_mov_b32 %s, %s\nv_mov_b32 %s, %s\nv_permlane32_swap_b32 %s, %s", r0, sx[0], r2, sx[0], r0, r2))
            ops.append(lambda: k.e("v_mov_b32 %s, %s\nv_mov_b32 %s, %s\nv_permlane16_swap_b32 %s, %s\nv_permlane16_swap_b32 %s, %s", r1, r0, r3, r2, r0, r1, r2, r3))
            ops.append(lambda: k.e("s_lshl_b32 %s, %s, 6\nv_lshl_add_u32 %s, %s, 2, %s\nds_bpermute_b32 %s, %s, %s", s2, self.s_wv, sx[1], self.v_s, s2, self.rstd, sx[1], sx[2]))
            return ops

        def epilogue(tt):
            f = fb[(6 * tt) % fb.n:(6 * tt) % fb.n + 6]
            ops = []
            for i in range(6):
                x = acc[12 * tt + 2 * i:12 * tt + 2 * i + 2]
                for h in range(2):
                    ops.append(lambda x=x, h=h, i=i: k.e("v_fma_f32 %s, -%s, %s, %s", x[h], self.cs[2 * i + h], mean[tt], x[h]))
            for i in range(6):
                x = acc[12 * tt + 2 * i:12 * tt + 2 * i + 2]
                ops.append(lambda x=x, i=i: k.e("v_cvt_pk_bf16_f32 %s, %s, %s", f[i], x[0], x[1]))
            for i in range(6):
                ops.append(lambda i=i: k.e("v_pk_max_i16 %s, %s, 0", f[i], f[i]))

            def store(fl):
                k.e("buffer_store_dwordx4 %s, %s, %s, %s offen%s", f[0:4], self.v_l16, self.WS, s4, fl)
                k.e("buffer_store_dwordx2 %s, %s, %s, %s offen%s", f[4:6], self.v_l8, self.WS, s8, fl)
            ops.append(lambda: self.shared_stores(store, 4))
            ops.append(lambda: k.e("s_add_u32 %s, %s, 6144\ns_add_u32 %s, %s, 6144", s4, s4, s8, s8))
            return ops

        self.rs2 = k.v(2)
        self.rstd = self.rs2[0]
        fill = []
        for i in range(4):
            fetch(i)
        since = 99
        for i, (ks, tt) in enumerate(seq):
            k.topup = self.o["top"] if i < 4 * self.o["stop_c"] else 0
            if ks < nk and tt == 0:
                for c in range(cs_done, 20 if ks == nk - 1 else min(20, cs_done + -(-(20 - cs_done) // (nk - ks)))):
                    colsum(c)
                    cs_done = c + 1
                if ks == nk - 3:
                    fill += stats()
            for t in range(3):
                self.mfma(acc[12 * tt + 4 * t:12 * tt + 4 * t + 4], self.w1[3 * ks + t], slot(i), 0 if ks == 0 else None)
                since += 1
                if t == 0:
                    fetch(i + 4)
                elif fill and since > 4:
                    fill.pop(0)()
                    if fill and t == 1:
                        fill.pop(0)()
                else:
                    k.tick()
            if self.o["fine"] & 2 and i % 10 == 9:
                self.stamp("c %d" % i)
            if ks < nk and tt == 3:
                refill(ks)
            if ks == 19 and ks >= nk:
                while fill:
                    fill.pop(0)()
                fill = epilogue(tt)
                since = 0
        self.stamp("ffn1 gemm")
        k.barrier()
        if nk == 20:
            fill += [op for tt in range(4) for op in epilogue(tt)]
        while fill:
            fill.pop(0)()
        self.dump("f", fb)
        k.drain_vm()
        k.e("s_add_u32 %s, %s, 256", st, self.s_oflag)
        self.set_flag(st, True)
        k.release(ad, ss, sh, ones, bb, a16, a8, acc, sx, fb, self.cs, s4, s8)
        self.stamp("f stored")

    def phase_d(self):
        k = self.k
        k.bg_now(self.o["pre_f"])
        k.wait_bg(self.b_park)
        t = k.v()
        k.e("v_add_u32 %s, %s, %s", t, self.s_park, self.v_l16)
        for i in range(20):
            k.e("ds_read_b128 %s, %s offset:%d", self.w2[i], t, PARK + 1024 * i)
        k.release(t)
        sb = self.tile_bases(F_OFF, 49152, 6144, 24576)
        self.poll_group(2, True)
        self.stamp("f seen")

        def load_tt(b, i):
            def fn(p, n):
                so = sb[2 * i + p]
                if n < 4:
                    return k.e("buffer_load_dwordx4 %s, %s, %s, %s offen offset:%d sc1", dest(p, n), self.v_l16, self.WS, so, 1024 * n)
                if n == 4:
                    k.e("s_add_u32 %s, %s, 4096", so, so)
                return k.e("buffer_load_dwordx2 %s, %s, %s, %s offen offset:%d sc1", dest(p, n), self.v_l8, self.WS, so, 512 * (n - 4))
            dest = lambda p, n: b[24 * p + 4 * n:24 * p + 4 * n + 4] if n < 4 else b[24 * p + 8 + 2 * n:24 * p + 10 + 2 * n]
            return [(lambda p=p, n=n: fn(p, n), dest(p, n)) for p in range(2) for n in range(8)]
        acc = self.ksplit_gemm(self.w2, 12, load_tt, 0)
        self.stamp("ffn2 gemm")
        self.add_packed(acc, self.hb, self.rs2)
        t = acc[0]
        st = self.s_tmp
        k.e("v_mul_u32_u24 %s, 1280, %s\nv_mad_u32_u24 %s, %s, 40, %s", t, self.v_s, t, self.v_g, t)
        k.e("s_lshl_b32 %s, %s, 2\ns_add_u32 %s, %s, %s\ns_mul_i32 %s, %s, 20480\ns_mul_i32 %s, %s, 160\ns_add_u32 %s, %s, %s",
            st, self.s_G, st, st, self.s_wv, st, st, self.s_tmp2, self.s_c, st, st, self.s_tmp2)
        hb, fl = self.hb, ("", " sc1", " nt", " sc1 nt")[self.o["outfl"]]
        k.e("buffer_store_dwordx4 %s, %s, %s, %s offen%s", hb[0:4], t, self.OUT, st, fl)
        k.e("buffer_store_dwordx4 %s, %s, %s, %s offen offset:16%s", hb[4:8], t, self.OUT, st, fl)
        k.e("buffer_store_dwordx2 %s, %s, %s, %s offen offset:32%s", hb[8:10], t, self.OUT, st, fl)
        k.release(acc, sb)
        lab = k.label("L_ep")
        k.e("s_or_b32 %s, s2, %s\ns_cmp_lg_u32 %s, 0\ns_cbranch_scc1 %s\ns_mov_b32 %s, 0x%x", st, self.s_wv, st, lab, st, EPOCH_OFF)
        k.cond_begin()
        self.set_flag(st, False)
        if self.o["meas"]:
            self.measure()
        k.cond_end()
        k.put(lab)

    def build(self):
        k = self.k
        self.prologue()
        self.phase_a()
        self.attn_out()
        self.phase_b()
        self.w2 = self.w1[15:35] + self.wo + self.w1[:15]

        def refill(ks):
            if ks < 5:
                self.queue_frags(self.s_w2, self.w1[3 * ks:3 * ks + 3], 45 + 3 * ks)
        self.phase_c(refill)
        k.release(*self.extra)
        self.phase_d()
        if self.stamps:
            k.drain_vm()
            self.stamp("end")
            st = self.s_tmp
            k.e("s_lshl_b32 %s, s2, 2\ns_add_u32 %s, %s, %s\ns_lshl_b32 %s, %s, 8\ns_add_u32 %s, %s, 0x%x", st, st, st, self.s_wv, st, st, st, st, STAMP_OFF)
            k.e("buffer_store_dword %s, %s, %s, %s offen", self.v_stamp, self.v_l4, self.WS, st)
        k.put("L_end")
        k.e("s_endpgm")
        return HEAD + k.text() + TAIL


if __name__ == "__main__":
    out = sys.argv[1] if len(sys.argv) > 1 else "cdna_kernels/%s.s" % NAME
    g = Gen()
    open(out, "w").write(g.build())
    print("written", out, "instructions", len(g.k.ins), "hi", g.k.hi)
```
